```python
import torch

def _softmax(x, axis=-1):
    return torch.softmax(x, dim=axis)

def _gelu(x):
    return torch.nn.functional.gelu(x, approximate='tanh')

def _silu(x):
    return torch.nn.functional.silu(x)

def _sigmoid(x):
    return torch.sigmoid(x)

def _layernorm(x, axis=-1, eps=1e-05):
    m = x.mean(dim=axis, keepdim=True)
    v = x.var(dim=axis, keepdim=True, unbiased=False)
    return (x - m) / torch.sqrt(v + eps)

def _scatter_add(tgt, idx, src, axis=0):
    return tgt.clone().index_add_(axis, idx, src)

def _segment_sum(src, seg, n):
    out = torch.zeros((n,) + src.shape[1:], dtype=src.dtype)
    return out.index_add_(0, seg, src)

def _pad(x, pw):
    flat = tuple((v for pair in reversed(pw) for v in pair))
    return torch.nn.functional.pad(x, flat)
kernel_name = 'standalone__window_attn_cswin__vision'

def setup_inputs():

    _w = lambda a: (lambda t: t.to(torch.bfloat16) if t.is_floating_point() else t)(torch.as_tensor(a))
    sw = 8
    H = W = 224 // sw * sw
    C = 96 // 2 * 2
    return {'x': _w((lambda *s: torch.randn(*s, dtype=torch.bfloat16) * 0.4)(1, H, W, C)), 'wqkv': _w((lambda *s: torch.randn(*s, dtype=torch.bfloat16) * 0.4)(C, 3 * C)), 'wo': _w((lambda *s: torch.randn(*s, dtype=torch.bfloat16) * 0.05)(C, C))}

def reference(x, wqkv, wo):
    B, H, W, C = x.shape
    sw = 8
    C2 = C // 2
    nh, nw = (H // sw, W // sw)
    qkv = torch.einsum('bhwc,cd->bhwd', x, wqkv)
    q, k, v = (qkv[..., :C].clone(), qkv[..., C:2 * C].clone(), qkv[..., 2 * C:].clone())
    scale = C2 ** (-0.5)
    qh = q[..., :C2].reshape(B * nh, sw * W, C2)
    kh = k[..., :C2].reshape(B * nh, sw * W, C2)
    vh = v[..., :C2].reshape(B * nh, sw * W, C2)
    ah = _softmax(torch.einsum('bqc,bkc->bqk', qh, kh) * scale, axis=-1)
    oh = torch.einsum('bqk,bkc->bqc', ah, vh).reshape(B, H, W, C2)
    qv = (lambda x, *d: x.permute(*d))(q[..., C2:].reshape(B, H, nw, sw, C2), 0, 2, 1, 3, 4).reshape(B * nw, H * sw, C2)
    kv = (lambda x, *d: x.permute(*d))(k[..., C2:].reshape(B, H, nw, sw, C2), 0, 2, 1, 3, 4).reshape(B * nw, H * sw, C2)
    vv = (lambda x, *d: x.permute(*d))(v[..., C2:].reshape(B, H, nw, sw, C2), 0, 2, 1, 3, 4).reshape(B * nw, H * sw, C2)
    av = _softmax(torch.einsum('bqc,bkc->bqk', qv, kv) * scale, axis=-1)
    ov = torch.einsum('bqk,bkc->bqc', av, vv).reshape(B, nw, H, sw, C2)
    ov = (lambda x, *d: x.permute(*d))(ov, 0, 2, 1, 3, 4).reshape(B, H, W, C2)
    o = _pad(oh, ((0, 0), (0, 0), (0, 0), (0, C2))) + _pad(ov, ((0, 0), (0, 0), (0, 0), (C2, 0)))
    return torch.einsum('bhwc,cd->bhwd', o, wo)
```

```python
from lib import *
from mainloop import *

S_WGID = 2
S_XSRD = 16
S_WAVE = 30
S_TYPE = 31
S_CL = 32
S_J = 33
S_START = 34
S_STRIPE = 35
S_A = 36; S_B = 37; S_C = 38; S_D = 39
S_OUT = 40
S_DBG = 44
S_W = 48
S_WO = 52
S_T0 = 56

def role_decode(P, exit_label):
    P(f"""
    s_cmp_ge_u32 s{S_WGID}, 256
    s_cbranch_scc1 {exit_label}
    s_and_b32 s{S_A}, s{S_WGID}, 7
    s_lshr_b32 s{S_B}, s{S_WGID}, 3
    s_cmp_lt_u32 s{S_A}, 4
    s_cselect_b32 s{S_C}, 20, 15
    s_cmp_lt_u32 s{S_B}, s{S_C}
    s_cbranch_scc0 L_roleH
    s_mul_i32 s{S_D}, s{S_B}, 52
    s_lshr_b32 s{S_D}, s{S_D}, 8
    s_mul_i32 s{S_J}, s{S_D}, 5
    s_sub_u32 s{S_J}, s{S_B}, s{S_J}
    s_lshl_b32 s{S_D}, s{S_D}, 3
    s_add_u32 s{S_STRIPE}, s{S_A}, s{S_D}
    s_mov_b32 s{S_CL}, s{S_STRIPE}
    s_mul_i32 s{S_START}, s{S_J}, 12
    s_mov_b32 s{S_TYPE}, 0
    s_branch L_roledone
    L_roleH:
    s_sub_u32 s{S_B}, s{S_B}, s{S_C}
    s_cmp_ge_u32 s{S_B}, 16
    s_cbranch_scc1 {exit_label}
    s_lshr_b32 s{S_D}, s{S_B}, 2
    s_and_b32 s{S_J}, s{S_B}, 3
    s_cmp_lt_u32 s{S_A}, 4
    s_cbranch_scc1 L_roleH_lo
    s_sub_u32 s{S_A}, s{S_A}, 4
    s_lshl_b32 s{S_A}, s{S_A}, 2
    s_add_u32 s{S_STRIPE}, s{S_A}, s{S_D}
    s_branch L_roleH_c
    L_roleH_lo:
    s_mul_i32 s{S_A}, s{S_A}, 3
    s_add_u32 s{S_A}, s{S_A}, 16
    s_add_u32 s{S_STRIPE}, s{S_A}, s{S_D}
    L_roleH_c:
    s_add_u32 s{S_CL}, s{S_STRIPE}, 28
    s_mul_i32 s{S_START}, s{S_J}, 14
    s_mov_b32 s{S_TYPE}, 1
    L_roledone:
    """)

def roles_py():
    out = []
    for wg in range(256):
        x = wg & 7; k = wg >> 3
        nV = 20 if x < 4 else 15
        if k < nV:
            lc = (k * 52) >> 8; j = k - 5 * lc; c = x + 8 * lc
            out.append((wg, 0, c, j, 12 * j))
        else:
            k2 = k - nV
            if k2 >= 16: continue
            lc = k2 >> 2; j = k2 & 3
            i = (x - 4) * 4 + lc if x >= 4 else 16 + x * 3 + lc
            out.append((wg, 1, 28 + i, j, 14 * j))
    return out

def kernel_header(name):
    return f""".globl {name}
.p2align 8
.type {name},@function
{name}:
"""
def kernel_footer(name, nv, accum, ns, nbytes=48):
    return f"""
.section .rodata,"a"
.p2align 6
.amdhsa_kernel {name}
  .amdhsa_next_free_vgpr {nv}
  .amdhsa_next_free_sgpr {ns}
  .amdhsa_accum_offset {accum}
  .amdhsa_group_segment_fixed_size 0
  .amdhsa_kernarg_size {nbytes}
  .amdhsa_user_sgpr_count 2
  .amdhsa_user_sgpr_kernarg_segment_ptr 1
  .amdhsa_system_sgpr_workgroup_id_x 1
.end_amdhsa_kernel
"""
```

```python
import re

def v(a, n=1): return f"v{a}" if n == 1 else f"v[{a}:{a+n-1}]"
def a(x, n=1): return f"a{x}" if n == 1 else f"a[{x}:{x+n-1}]"
def s(x, n=1): return f"s{x}" if n == 1 else f"s[{x}:{x+n-1}]"

class Prog:
    def __init__(self):
        self.L = []
    def __call__(self, t):
        for line in t.split("\n"):
            line = line.strip()
            if line: self.L.append(line)
    def ext(self, lines):
        for l in lines: self(l)
    def text(self):
        out = []
        for l in self.L:
            if l.endswith(":") or l.startswith("."): out.append(l)
            else: out.append("  " + l)
        return "\n".join(out) + "\n"

REG = re.compile(r"\b([vas])(\d+)\b|\b([vas])\[(\d+):(\d+)\]")
def regs(tok):
    out = set()
    for m in REG.finditer(tok):
        if m.group(1): out.add((m.group(1), int(m.group(2))))
        else:
            for i in range(int(m.group(4)), int(m.group(5)) + 1): out.add((m.group(3), i))
    for sp in ("vcc", "exec", "m0", "scc"):
        if re.search(r"\b%s(_lo|_hi)?\b" % sp, tok): out.add((sp, 0))
    return out

TRANS = ("v_exp_f32", "v_log_f32", "v_rcp_f32", "v_rsq_f32", "v_sqrt_f32", "v_sin_f32", "v_cos_f32", "v_rcp_iflag_f32", "v_exp_f16", "v_rcp_f16")

class Ins:
    def __init__(self, text):
        self.text = text
        t = text.split(";")[0].strip()
        self.t = t
        parts = t.split(None, 1)
        self.op = parts[0]
        ops = [o.strip() for o in parts[1].split(",")] if len(parts) > 1 else []
        self.ops = ops
        op = self.op
        self.kind = "other"
        self.w = set(); self.r = set()
        self.srcC = set(); self.srcAB = set()
        if op.startswith("v_mfma"):
            self.kind = "mfma"
            self.w = regs(ops[0]); self.srcAB = regs(ops[1]) | regs(ops[2]); self.srcC = regs(ops[3])
            self.r = self.srcAB | self.srcC
            self.passes = 8 if "32x32" in op else 4
        elif op.startswith("v_cmp"):
            self.kind = "valu"
            self.w = regs(ops[0]); self.r = set().union(*[regs(o) for o in ops[1:]])
            if op.startswith("v_cmpx"): self.w.add(("exec", 0))
        elif op in ("v_readfirstlane_b32", "v_readlane_b32"):
            self.kind = "valu"
            self.w = regs(ops[0]); self.r = set().union(*[regs(o) for o in ops[1:]])
        elif op.startswith("v_permlane") or op.startswith("v_swap"):
            self.kind = "valu"
            self.w = regs(ops[0]) | regs(ops[1]); self.r = set(self.w)
        elif op.startswith("v_"):
            self.kind = "valu"
            self.w = regs(ops[0]);
            rest = ops[1:]
            if op in ("v_add_co_u32", "v_sub_co_u32", "v_addc_co_u32", "v_subb_co_u32", "v_div_scale_f32", "v_mad_u64_u32"):
                self.w |= regs(ops[1]); rest = ops[2:]
            self.r = set().union(*[regs(o) for o in rest]) if rest else set()
            if op.startswith(("v_fmac", "v_mac", "v_pk_fmac", "v_dot2c", "v_writelane")) or "UNUSED_PRESERVE" in t or op.startswith(("v_fma_mixhi", "v_fma_mixlo")):
                self.r |= regs(ops[0])
            if op.startswith("v_cndmask_b32") and len(ops) == 3: self.r.add(("vcc", 0))
        elif op.startswith("ds_read") or op.startswith("ds_bpermute") or op.startswith("ds_swizzle") or op.startswith("ds_permute"):
            self.kind = "dsread"
            self.w = regs(ops[0]); self.r = set().union(*[regs(o.split()[0]) for o in ops[1:]])
        elif op.startswith("ds_"):
            self.kind = "dswrite"
            self.r = set().union(*[regs(o.split()[0]) for o in ops])
        elif op.startswith("buffer_load") or op.startswith("global_load"):
            lds = bool(re.search(r"\blds\b", t))
            if lds:
                self.kind = "dma"
                self.r = set().union(*[regs(o.split()[0]) for o in ops]) | {("m0", 0)}
            else:
                self.kind = "vload"
                self.w = regs(ops[0]); self.r = set().union(*[regs(o.split()[0]) for o in ops[1:]])
        elif op.startswith("buffer_store") or op.startswith("global_store"):
            self.kind = "vstore"
            self.r = set().union(*[regs(o.split()[0]) for o in ops])
            if op.startswith("buffer_store"): self.data = regs(ops[0])
            else: self.data = regs(ops[1])
            self.wide = ("x3" in op or "x4" in op)
        elif op.startswith("buffer_atomic") or op.startswith("global_atomic"):
            self.kind = "vatomic"
            self.r = set().union(*[regs(o.split()[0]) for o in ops])
            if re.search(r"\bsc0\b", t): self.w = regs(ops[0])
        elif op.startswith("s_load") or op.startswith("s_memtime") or op.startswith("s_memrealtime"):
            self.kind = "smem"
            self.w = regs(ops[0]); self.r = set().union(*[regs(o) for o in ops[1:]]) if len(ops) > 1 else set()
        elif op == "s_waitcnt":
            self.kind = "wait"
            m = re.search(r"vmcnt\((\d+)\)", t); self.vm = int(m.group(1)) if m else None
            m = re.search(r"lgkmcnt\((\d+)\)", t); self.lgkm = int(m.group(1)) if m else None
        elif op == "s_nop":
            self.kind = "nop"; self.n = int(ops[0], 0) + 1
        elif op.startswith("s_cbranch") or op == "s_branch":
            self.kind = "branch"
        elif op in ("s_barrier", "s_endpgm", "s_setprio", "s_sleep"):
            self.kind = "sctl"
        elif op.startswith("s_cmp"):
            self.kind = "salu"; self.r = set().union(*[regs(o) for o in ops]); self.w = {("scc", 0)}
        elif op.startswith("s_"):
            self.kind = "salu"
            self.w = regs(ops[0]); self.r = set().union(*[regs(o) for o in ops[1:]]) if len(ops) > 1 else set()
            if op.startswith(("s_and_saveexec", "s_or_saveexec")): self.w.add(("exec", 0))
        else:
            raise ValueError("unknown instr: " + text)
    def ws(self):
        return self.n if self.kind == "nop" else 1

def check_linear(lines, name="", verbose=True):
    ins = []
    for l in lines:
        l = l.strip()
        if not l or l.endswith(":") or l.startswith(".") or l.startswith(";"): continue
        ins.append(Ins(l))
    probs = []
    n = len(ins)
    pre = [0]
    for x in ins: pre.append(pre[-1] + x.ws())
    def dist(i, j): return pre[j] - pre[i + 1]
    W = 24
    for j, c in enumerate(ins):
        i = j - 1
        while i >= 0 and dist(i, j) < W:
            p = ins[i]; d = dist(i, j)
            def bad(need, why):
                if d < need: probs.append(f"{name}: [{why}] need {need} got {d}: '{p.t}' -> '{c.t}'")
            vw = {x for x in p.w if x[0] in "va"}
            if p.kind == "valu":
                if c.kind == "mfma" and (vw & c.r): bad(2, "valu->mfma")
                if p.op in TRANS and c.kind == "valu" and (vw & c.r): bad(1, "trans->valu")
                if p.op in TRANS and c.kind in ("vstore", "dswrite") and (vw & c.r): bad(1, "trans->mem?")
                if c.op.startswith("v_permlane") and (vw & c.r): bad(2, "valu->permlane")
                if c.op in ("v_readfirstlane_b32", "v_readlane_b32") and (vw & c.r): bad(1, "valu->readlane")
                sw = {x for x in p.w if x[0] in ("s", "vcc")}
                if sw:
                    if c.kind in ("vload", "vstore", "dma", "vatomic") and (sw & c.r): bad(5, "valu sgpr->vmem")
                    if c.kind == "valu" and (sw & c.r): bad(2, "valu sgpr->valu const")
                    if c.kind == "salu" and (sw & c.r): bad(1, "valu sgpr->salu (pad)")
                if ("exec", 0) in p.w and c.kind in ("valu", "mfma"): bad(4, "valu exec->")
                if "dpp" in c.t and (vw & c.r): bad(2, "valu->dpp")
                if "_sdwa" in p.op and c.kind == "valu" and (vw & (c.r | c.w)): bad(1, "sdwa->valu")
            if p.kind == "mfma":
                D = p.w
                big = 12 if p.passes == 8 else 8
                if c.kind == "mfma":
                    if D & c.srcAB: bad(big, "mfma D->mfma AB")
                    if D & c.srcC:
                        if not (c.srcC == D and c.passes == p.passes): bad(10 if p.passes == 8 else 6, "mfma D->mfma C overlap")
                    elif (D & c.w):
                        bad(big, "mfma D->mfma D WAW (new C)")
                elif c.kind in ("valu",):
                    if D & (c.r | c.w): bad(big, "mfma D->valu")
                    if p.srcC & c.w and not (D & c.w): bad(7 if p.passes == 8 else 3, "mfma C WAR valu")
                elif c.kind in ("vstore", "dswrite", "vatomic", "dma"):
                    if D & c.r: bad(big, "mfma D->mem read")
                elif c.kind in ("dsread", "vload"):
                    if D & (c.r | c.w): bad(big, "mfma D->load")
            if p.kind == "salu" and ("m0", 0) in p.w and c.kind == "dma": bad(1, "m0->dma")
            if p.kind == "vstore" and p.wide:
                if c.kind == "valu" and (p.data & c.w): bad(2, "store data WAR valu")
                elif c.kind in ("dsread", "vload", "mfma") and (p.data & c.w): bad(1, "store data WAR")
            i -= 1
    vmq = []; lq = []
    smem_out = []
    for j, c in enumerate(ins):
        if c.kind == "wait":
            if c.vm is not None:
                while len(vmq) > c.vm: vmq.pop(0)
            if c.lgkm is not None:
                if c.lgkm == 0: lq = []
                else:
                    if any(k == "smem" for (_, _, k) in lq): probs.append(f"{name}: counted lgkmcnt with smem outstanding at '{c.t}' idx {j}")
                    while len(lq) > c.lgkm: lq.pop(0)
            continue
        touched = (c.r | c.w)
        for (i, d) in vmq:
            if d & touched and not (c.kind in ("vload",) and not (d & c.r)):
                probs.append(f"{name}: vmcnt: '{c.t}' touches pending load '{ins[i].t}'")
        for (i, d, k) in lq:
            if d & touched and not (c.kind == "dsread" and not (d & c.r)):
                probs.append(f"{name}: lgkmcnt: '{c.t}' touches pending '{ins[i].t}'")
        if c.kind in ("vload", "vatomic"): vmq.append((j, set(c.w)))
        elif c.kind in ("vstore", "dma"): vmq.append((j, set()))
        elif c.kind == "dsread": lq.append((j, set(c.w), "ds"))
        elif c.kind == "dswrite": lq.append((j, set(), "ds"))
        elif c.kind == "smem": lq.append((j, set(c.w), "smem"))
        if len(vmq) > 63: probs.append(f"{name}: vmcnt overflow at '{c.t}'")
    return probs
```

```python
from lib import *

TILE = 7168
STAGE = 4 * TILE
DSLOT = 2 * STAGE
RING = 4 * STAGE
import os
NSTAGE = int(os.environ.get('NSTAGE', 14))

V_TID = 0
V_L16 = 1
V_AP = 2
V_T = 6
V_O = 16
V_S = 144
V_E = 176
V_P = 192
V_Q = 208
A_K = 0
A_V = 24
S_WS = 8
S_DM = 12
S_GOFF = 20
S_GEND = 21
S_LBASE = 22
S_DELTA = 23
S_IT = 24
S_TMP = 25
S_TMP2 = 26
S_NREC = 27
S_GOFF2 = 28

def O(q): return V_O + 32 * q
def S(b): return V_S + 16 * b
def P(b): return V_P + 8 * b
def Q(q): return V_Q + 12 * q
def K(b): return A_K + 12 * b
def V(b): return A_V + 16 * b

def mf_S(u, sb, t):
    q, g = u
    c = "0" if t == 0 else v(S(sb), 16)
    return f"v_mfma_f32_32x32x16_bf16 {v(S(sb),16)}, {a(K(g%2)+4*t,4)}, {v(Q(q)+4*t,4)}, {c}"
def mf_PV(u, pb, k):
    q, g = u
    m, st = [(0,0),(1,0),(0,1),(1,1)][k]
    d = O(q) + 16*m
    return f"v_mfma_f32_32x32x16_bf16 {v(d,16)}, {a(V(g%2)+8*m+4*st,4)}, {v(P(pb)+4*st,4)}, {v(d,16)}"

from functools import lru_cache
COST = dict(ds=8, dma=13, salu=4, wait=4, bar=4)
def extra_cost(items):
    t = 0; first = True
    for x in items:
        if x.startswith("v_"): c = 4
        elif x.startswith("ds_"): c = COST['ds']
        elif x.startswith("buffer_load"): c = COST['dma']
        else: c = 4
        if first and not x.startswith("v_"): c -= 4
        first = False
        t += c
    return t

def plan_gaps(ex_costs):
    INF = 10**9
    @lru_cache(None)
    def go(i, e, c, d):
        if i == 7:
            return (0, ()) if (e == 16 and c == 6 and d == 2) else (INF, ())
        best = (INF, ())
        for nd in range(0, 2 - d + 1):
            if i >= 2 and d + nd < 2: continue
            for ne in range(0, min(4, 16 - e) + 1):
                cmax = min(6, e // 2)
                for nc in range(0, cmax - c + 1):
                    if nc > 4: break
                    t = 8 + ex_costs[i] + 8 * ne + 4 * (nc + nd)
                    cost = max(32, t)
                    sub = go(i + 1, e + ne, c + nc, d + nd)
                    tot = cost + sub[0]
                    if tot < best[0]: best = (tot, ((ne, nc, nd),) + sub[1])
        return best
    r = go(0, 0, 0, 0)
    return r

_pg = {}
def plan_gaps_c(costs):
    if costs not in _pg:
        global _costs
        plan_gaps.__wrapped__ if False else None
        _pg[costs] = plan_gaps(list(costs))
    return _pg[costs]

def valu_gaps(b, plan):
    e = c = 0; d = 6
    out = []
    for (ne, nc, nd) in plan:
        l = []
        es = [f"v_exp_f32 {v(V_E+e+k)}, {v(S(b)+e+k)}" for k in range(ne)]; e += ne
        cs = [f"v_cvt_pk_bf16_f32 {v(P(1-b)+d+k)}, {v(V_E+2*(d+k))}, {v(V_E+2*(d+k)+1)}" for k in range(nd)]; d += nd
        cs += [f"v_cvt_pk_bf16_f32 {v(P(b)+c+k)}, {v(V_E+2*(c+k))}, {v(V_E+2*(c+k)+1)}" for k in range(nc)]; c += nc
        out.append(es + cs)
    assert e == 16 and c == 6 and d == 8
    return out

def stage_units(typ):
    u = []
    for p in range(4):
        qs = [0, 1, 2] + ([3] if (typ == 'H' and p % 2 == 1) else [])
        for q in qs: u.append((q, p))
    return u

def dma_tile(ldsexpr_base, sb_off):
    L = []
    L.append(f"s_add_u32 m0, s{S_LBASE}, {sb_off}")
    for c in range(4):
        L.append(f"buffer_load_dwordx4 v{V_L16}, s[{S_DM}:{S_DM+3}], s{S_GOFF} offen offset:{c*1024} lds")
    L.append(f"s_add_u32 m0, s{S_LBASE}, {sb_off + 4096}")
    for c in range(3):
        L.append(f"buffer_load_dwordx4 v{V_L16}, s[{S_DM}:{S_DM+3}], s{S_GOFF2} offen offset:{c*1024} lds")
    return L
def dma_advance():
    return [f"s_add_u32 s{S_GOFF}, s{S_GOFF}, {STAGE}",
            f"s_cmp_ge_u32 s{S_GOFF}, s{S_GEND}",
            f"s_cselect_b32 s{S_TMP}, {56*TILE}, 0",
            f"s_sub_u32 s{S_GOFF}, s{S_GOFF}, s{S_TMP}",
            f"s_add_u32 s{S_GOFF2}, s{S_GOFF}, 4096"]

def reads_K(g):
    sb, p = (g // 4) % 2, g % 4
    return [("ds", ('K', g % 8), f"ds_read_b128 {a(K(g%2)+4*t,4)}, v{V_AP+p} offset:{sb*STAGE + t*1024}") for t in range(3)]
def reads_V(g):
    sb, p = (g // 4) % 2, g % 4
    return [("ds", ('V', g % 8), f"ds_read_b128 {a(V(g%2)+4*c,4)}, v{V_AP+p} offset:{sb*STAGE + (3+c)*1024}") for c in range(4)]

def build(typ, tag):
    su = stage_units(typ)
    ns = len(su)
    N = 2 * ns
    U = [(q, 4*sb + p) for sb in range(2) for (q, p) in su]
    first = {}; last = {}
    for i, (q, g) in enumerate(U):
        first.setdefault(g, i); last[g] = i
    firstS = {g: first[g] - 1 for g in first}; lastS = {g: last[g] - 1 for g in first}
    firstPV = {g: first[g] + 1 for g in first}; lastPV = {g: last[g] + 1 for g in first}
    extras = [[] for _ in range(N)]
    pinned = {}
    def pin(slot, sh, item): pinned.setdefault((slot % N, sh), []).append(item)
    rV3 = lastPV[1] + 1
    B = rV3 + 2
    rK = {}; rV = {}
    for g in range(8):
        k = lastS[(g - 2) % 8] + 1 - (N if g < 2 else 0)
        vv = lastPV[(g - 2) % 8] + 1 - (N if g < 2 else 0)
        st = g // 4
        bar_prev = (st - 1) * ns + B
        k = max(k, bar_prev); vv = max(vv, bar_prev + 1)
        if g % 4 == 0:
            k = max(k, firstS[g] - 2); vv = max(vv, firstPV[g] - 1)
        if g % 4 == 1:
            k = max(k, firstS[g] - 2)
        assert k <= firstS[g] - 2, (typ, g, k, firstS[g])
        assert vv <= firstPV[g] - 1, (typ, g, vv, firstPV[g])
        rK[g] = k; rV[g] = vv
    for g in range(8):
        st = g // 4
        assert rK[g] <= st * ns + B - 2 and rV[g] <= st * ns + B - 2, (typ, g, rK[g], rV[g], B)
    for sb in range(2):
        sl = sb * ns + B
        pin(sl, 0, ("raw", None, "s_waitcnt vmcnt(14) lgkmcnt(0)"))
        pin(sl, 1, ("raw", None, "s_barrier"))
    tmp = [[] for _ in range(N)]
    for g in range(8):
        tmp[rK[g] % N].append((firstS[g] - rK[g] - 0.5, reads_K(g)))
        tmp[rV[g] % N].append((firstPV[g] - rV[g], reads_V(g)))
    for i in range(N):
        for _, rd in sorted(tmp[i], key=lambda x: x[0]):
            extras[i].extend(rd)
    chains = {}
    for sb in range(2):
        sl = sb * ns + B
        chains[sl % N] = dma_tile(None, sb * STAGE)
        chains[(sb * ns + 2) % N] = dma_advance()
    for g in range(8):
        pin(firstS[g] - 1, 6, ("wait", ('K', g), None))
        pin(firstPV[g], 0, ("wait", ('V', g), None))
    toggles = {}
    for p in range(4):
        sl = rV[4 + p]
        assert rK[p] + N > sl
        toggles.setdefault(sl % N, []).append(f"v_add_u32 v{V_AP+p}, s{S_DELTA}, v{V_AP+p}")
    items = []
    chain = []
    est_total = 0
    for i in range(N):
        un = U[(i + 1) % N]; up = U[(i - 1) % N]
        sS = [mf_S(un, (i + 1) % 2, t) for t in range(3)]; sP = [mf_PV(up, (i - 1) % 2, k) for k in range(4)]
        mf = [sS[0], sP[0], sS[1], sP[1], sS[2], sP[2], sP[3]]
        ex = list(extras[i])
        sh = [[] for _ in range(7)]
        for m in range(7):
            pp = pinned.get((i, m), [])
            for it in pp: sh[m].append(it)
            if m == 2 and i in chains:
                assert not chain
                chain = list(chains[i])
            if not pp:
                if ex: sh[m].append(ex.pop(0))
                elif chain:
                    x = chain.pop(0); sh[m].append(("raw", None, x))
                    if x.startswith("s_cmp"):
                        sh[m].append(("raw", None, chain.pop(0)))
        assert not ex, (typ, i, ex)
        tg = toggles.get(i, [])
        costs = [extra_cost([(it[2] or "s_waitcnt") for it in sh[m]]) for m in range(7)]
        costs[6] += 4 * len(tg)
        tot, plan = plan_gaps(tuple(costs)) if False else plan_gaps_c(tuple(costs))
        est_total += tot
        gaps = valu_gaps(i % 2, plan)
        for m in range(7):
            items.append(("raw", None, mf[m]))
            for it in sh[m]: items.append(it)
            for x in gaps[m]: items.append(("raw", None, x))
            if m == 6:
                for x in tg: items.append(("raw", None, x))
    print(typ, "estimated cycles/unit", est_total / N)
    assert not chain, chain
    dsidx = [j for j, it in enumerate(items) if it[0] == "ds"]
    body = []
    for j, it in enumerate(items):
        if it[0] == "wait":
            tagk = (it[1][0], it[1][1] % 8)
            n = 0; found = False
            jj = j
            for step in range(1, len(items) + 1):
                k = (j - step) % len(items)
                x = items[k]
                if x[0] == "ds":
                    if x[1] == tagk: found = True; break
                    n += 1
                elif x[0] == "raw" and "lgkmcnt(0)" in x[2]:
                    n = -1; found = True; break
            assert found
            if n >= 0:
                assert n <= 15
                body.append(f"s_waitcnt lgkmcnt({n})")
            else:
                body.append("s_nop 0")
        else:
            body.append(it[2])
    body = [x for x in body]
    tail = [f"s_add_u32 s{S_LBASE}, s{S_LBASE}, s{S_DELTA}",
            f"s_sub_u32 s{S_DELTA}, 0, s{S_DELTA}",
            f"s_add_u32 s{S_IT}, s{S_IT}, 2",
            f"s_cmp_lt_u32 s{S_IT}, {NSTAGE - 4}",
            f"s_cselect_b32 s{S_DM+2}, s{S_NREC}, 0",
            f"s_cmp_lt_u32 s{S_IT}, {NSTAGE}",
            f"s_cbranch_scc1 L_loop_{tag}"]
    pre = []
    for it in reads_K(0): pre.append(it[2])
    for r in range(8): pre.append(f"v_mov_b32 {v(P(1)+r)}, 0")
    for r in range(12, 16): pre.append(f"v_mov_b32 {v(V_E+r)}, 0")
    for r in range(16): pre.append(f"v_accvgpr_write_b32 {a(V(1)+r)}, 0")
    for q in range(4 if typ == 'H' else 3):
        for r in range(32): pre.append(f"v_mov_b32 {v(O(q)+r)}, 0")
    pre.append("s_waitcnt lgkmcnt(0)")
    for t in range(3): pre.append(mf_S(U[0], 0, t))
    pre.append("s_nop 7"); pre.append("s_nop 7")
    bl = (N - 1) % 2
    post = [f"v_cvt_pk_bf16_f32 {v(P(bl)+d)}, {v(V_E+2*d)}, {v(V_E+2*d+1)}" for d in (6, 7)] + ["s_nop 1"]
    post += [mf_PV(U[N-1], (N - 1) % 2, k) for k in range(4)] + ["s_nop 7", "s_nop 7"]
    return dict(pre=pre, body=body, tail=tail, post=post, N=N, B=B, U=U)

if __name__ == "__main__":
    for typ in "HV":
        r = build(typ, typ)
        print(typ, r['N'], r['B'], len(r['body']))
        lines = r['pre'] + r['body'] + r['body'] + r['post']
        pr = check_linear(lines, typ)
        print("\n".join(pr[:20]) if pr else "no hazards")
    r = build('H', 'H')
    print("\n".join(r['body'][:120]))
```

```python
import sys, os
from common import *
import mainloop as ML

NAME = "standalone__window_attn_cswin__vision_kernel"
STOP = os.environ.get("STOP", "")
XBYTES = 224*224*96*2
WBYTES = 96*288*2
WOBYTES = 96*96*2
KVBYTES = 56*56*TILE
OVBASE = 0x1600000
OVBYTES = 56*28*3072
WSBYTES = OVBASE + OVBYTES
assert OVBASE >= KVBYTES
WIMG = 3*STAGE
WOIMG = 163840 - WOBYTES
assert WIMG + 56*1024 <= WOIMG
LDSBYTES = 163840
SCALE_HEX = 0x3e553b95

S_SC = 46
S_XO = 68
S_TB = 72
S_KO = 76
S_KO2 = 80
S_LO = 84
S_OVO = 88
S_MASK = 92
S_CNT = 94
S_BAD = 96

A_XF = 160
A_WF = 40
V_X = 6
V_W0 = 7; V_W1 = 8
V_LW = 9
V_TMP = 10
DSET = [16, 96]
V_ONES = 176
V_PK = 192

P = Prog()
CHK = []
def section_check(lines, name):
    CHK.extend(check_linear(lines, name))

def wf(tile, t): return A_WF + (tile*6 + t)*4

def prologue():
    P(f"""
    s_load_dwordx4 s[4:7], s[0:1], 0
    s_load_dwordx4 s[60:63], s[0:1], 16
    s_load_dwordx4 s[64:67], s[0:1], 32
    v_lshrrev_b32 v{V_TMP}, 6, v0
    v_and_b32 v{V_TMP+1}, 63, v0
    v_lshlrev_b32 v{V_L16}, 4, v{V_TMP+1}
    v_readfirstlane_b32 s{S_WAVE}, v{V_TMP}
    """)
    role_decode(P, "L_exit")
    mark = len(P.L)
    P(f"""
    s_waitcnt lgkmcnt(0)
    s_mov_b32 s{S_XSRD}, s4
    s_and_b32 s{S_XSRD+1}, s5, 0xffff
    s_mov_b32 s{S_XSRD+2}, {XBYTES}
    s_mov_b32 s{S_XSRD+3}, 0x20000
    s_mov_b32 s{S_W}, s6
    s_and_b32 s{S_W+1}, s7, 0xffff
    s_mov_b32 s{S_W+2}, {WBYTES}
    s_mov_b32 s{S_W+3}, 0x20000
    s_mov_b32 s{S_WO}, s60
    s_and_b32 s{S_WO+1}, s61, 0xffff
    s_mov_b32 s{S_WO+2}, {WOBYTES}
    s_mov_b32 s{S_WO+3}, 0x20000
    s_mov_b32 s{S_OUT}, s62
    s_and_b32 s{S_OUT+1}, s63, 0xffff
    s_mov_b32 s{S_OUT+2}, {XBYTES}
    s_mov_b32 s{S_OUT+3}, 0x20000
    s_mov_b32 s{S_DBG}, s64
    s_mov_b32 s{S_DBG+1}, s65
    s_mov_b32 s{S_WS}, s66
    s_and_b32 s{S_WS+1}, s67, 0xffff
    s_mov_b32 s{S_WS+2}, {WSBYTES}
    s_mov_b32 s{S_WS+3}, 0x20000
    s_mov_b32 s{S_DM}, s66
    s_and_b32 s{S_DM+1}, s67, 0xffff
    s_mov_b32 s{S_DM+2}, {KVBYTES}
    s_mov_b32 s{S_DM+3}, 0x20000
    s_mov_b32 s{S_NREC}, {KVBYTES}
    s_mov_b32 s{S_SC}, {SCALE_HEX:#x}
    s_mov_b32 s{S_SC+1}, {SCALE_HEX:#x}
    """)
    P(f"s_mul_i32 s{S_A}, s{S_WAVE}, {14*1024}")
    for g in range(4):
        n = 4 if g < 3 else 2
        P(f"s_add_u32 s{S_B}, s{S_A}, {g*4096}")
        P(f"s_add_u32 m0, s{S_B}, {WIMG}")
        P("s_nop 0")
        for c in range(n):
            P(f"buffer_load_dwordx4 v{V_L16}, s[{S_W}:{S_W+3}], s{S_B} offen offset:{c*1024} lds")
    P(f"""
    v_and_b32 v{V_TMP}, 31, v{V_TMP+1}
    v_lshrrev_b32 v{V_TMP+2}, 3, v{V_TMP}
    v_and_b32 v{V_TMP+3}, 7, v{V_TMP}
    v_mul_u32_u24 v{V_TMP+2}, {224*192}, v{V_TMP+2}
    v_mul_u32_u24 v{V_TMP+3}, 192, v{V_TMP+3}
    v_add_u32 v{V_X}, v{V_TMP+2}, v{V_TMP+3}
    v_lshrrev_b32 v{V_TMP+2}, 5, v{V_TMP+1}
    v_lshlrev_b32 v{V_TMP+3}, 4, v{V_TMP+2}
    v_add_u32 v{V_X}, v{V_X}, v{V_TMP+3}
    """)
    for b in range(4):
        if b < 3:
            P(f"s_mul_i32 s{S_A}, s{S_WAVE}, 3\ns_add_u32 s{S_A}, s{S_A}, {b}")
        else:
            P(f"s_lshr_b32 s{S_A}, s{S_WAVE}, 1\ns_add_u32 s{S_A}, s{S_A}, 12")
        if b < 3:
            P(f"""
            s_lshr_b32 s{S_B}, s{S_A}, 2
            s_mul_i32 s{S_B}, s{S_B}, {STAGE}
            s_and_b32 s{S_C}, s{S_A}, 3
            s_mul_i32 s{S_C}, s{S_C}, {TILE}
            s_add_u32 s{S_LO+b}, s{S_B}, s{S_C}
            """)
        P(f"""
        s_add_u32 s{S_A}, s{S_A}, s{S_START}
        s_cmp_ge_u32 s{S_A}, 56
        s_cselect_b32 s{S_B}, 56, 0
        s_cselect_b32 s{S_D}, 1, 0
        s_sub_u32 s{S_TB+b}, s{S_A}, s{S_B}
        s_mul_i32 s{S_B}, s{S_CL}, 56
        s_add_u32 s{S_B}, s{S_B}, s{S_TB+b}
        s_mul_i32 s{S_KO+b}, s{S_B}, {TILE}
        s_add_u32 s{S_KO2+b}, s{S_KO+b}, 4096
        s_cmp_eq_u32 s{S_TYPE}, 0
        s_cbranch_scc1 L_geoV{b}
        s_and_b32 s{S_A}, s{S_TB+b}, 1
        s_lshl_b32 s{S_B}, s{S_STRIPE}, 1
        s_add_u32 s{S_A}, s{S_A}, s{S_B}
        s_lshr_b32 s{S_B}, s{S_TB+b}, 1
        s_branch L_geoC{b}
        L_geoV{b}:
        s_mov_b32 s{S_A}, s{S_TB+b}
        s_mov_b32 s{S_B}, s{S_STRIPE}
        L_geoC{b}:
        s_mul_i32 s{S_C}, s{S_A}, {4*224*192}
        s_mul_i32 s{S_XO+b}, s{S_B}, {8*192}
        s_add_u32 s{S_XO+b}, s{S_XO+b}, s{S_C}
        s_mul_i32 s{S_A}, s{S_A}, 28
        s_add_u32 s{S_A}, s{S_A}, s{S_B}
        s_mul_i32 s{S_A}, s{S_A}, 3072
        s_add_u32 s{S_A}, s{S_A}, {OVBASE}
        s_cmp_eq_u32 s{S_D}, 1
        s_cselect_b32 s{S_OVO+b}, 0x7fff0000, s{S_A}
        """)
        for t in range(6):
            P(f"buffer_load_dwordx4 {a(A_XF+24*b+4*t,4)}, v{V_X}, s[{S_XSRD}:{S_XSRD+3}], s{S_XO+b} offen offset:{32*t}")
    P(f"""
    v_lshrrev_b32 v{V_TMP+2}, 5, v{V_TMP+1}
    v_lshlrev_b32 v{V_TMP+2}, 3, v{V_TMP+2}
    v_and_b32 v{V_TMP+3}, 15, v{V_TMP+1}
    v_lshrrev_b32 v{V_TMP+3}, 2, v{V_TMP+3}
    v_add_u32 v{V_TMP+2}, v{V_TMP+2}, v{V_TMP+3}
    v_mul_u32_u24 v{V_W0}, 576, v{V_TMP+2}
    v_lshrrev_b32 v{V_TMP+2}, 4, v{V_TMP+1}
    v_and_b32 v{V_TMP+2}, 1, v{V_TMP+2}
    v_lshlrev_b32 v{V_TMP+3}, 5, v{V_TMP+2}
    v_add_u32 v{V_W0}, v{V_W0}, v{V_TMP+3}
    v_and_b32 v{V_TMP+3}, 3, v{V_TMP+1}
    v_lshlrev_b32 v{V_TMP+3}, 3, v{V_TMP+3}
    v_add_u32 v{V_W0}, v{V_W0}, v{V_TMP+3}
    s_xor_b32 s{S_A}, s{S_TYPE}, 1
    s_mul_i32 s{S_A}, s{S_A}, 96
    s_add_u32 s{S_A}, s{S_A}, {WIMG}
    v_add_u32 v{V_W0}, s{S_A}, v{V_W0}
    v_mul_u32_u24 v{V_TMP+2}, 96, v{V_TMP+2}
    v_add_u32 v{V_W1}, v{V_W0}, v{V_TMP+2}
    """)
    P(f"""
    v_and_b32 v{V_TMP}, 27, v{V_TMP+1}
    v_cmp_eq_u32 vcc, 16, v{V_TMP}
    v_mov_b32 v{V_TMP+2}, 0
    v_mov_b32 v{V_TMP+3}, 1.0
    v_cndmask_b32 v{V_ONES}, v{V_TMP+2}, v{V_TMP+3}, vcc
    v_and_b32 v{V_TMP}, 16, v{V_TMP+1}
    v_cmp_eq_u32 s[{S_MASK}:{S_MASK+1}], 0, v{V_TMP}
    """)
    for r in range(1, 16): P(f"v_mov_b32 v{V_ONES+r}, v{V_ONES}")
    P("s_waitcnt vmcnt(24)")
    P("s_barrier")
    cols = [0, 32, 112, 192, 224]
    for tile in range(5):
        for t in range(6):
            for jj in range(2):
                base = V_W1 if tile == 1 else V_W0
                off = (16*t + 4*jj)*576 + cols[tile]*2
                if tile < 4:
                    P(f"ds_read_b64_tr_b16 {a(wf(tile,t)+2*jj,2)}, v{base} offset:{off}")
                else:
                    P(f"ds_read_b64_tr_b16 {v(16+4*t+2*jj,2)}, v{base} offset:{off}")
    P("s_waitcnt lgkmcnt(0)")
    for r in range(24):
        P(f"v_cndmask_b32 v{16+r}, 0, v{16+r}, s[{S_MASK}:{S_MASK+1}]")
    for r in range(24):
        P(f"v_accvgpr_write_b32 {a(wf(4,0)+r)}, v{16+r}")
    section_check(P.L[mark:], "prologue")

def prod_mfmas(b):
    D = DSET[b % 2]
    L = []
    for t in range(6):
        xf = a(A_XF+24*b+4*t, 4)
        for tile in range(3):
            d = v(D+16*tile, 16)
            L.append(f"v_mfma_f32_32x32x16_bf16 {d}, {a(wf(tile,t),4)}, {xf}, {'0' if t == 0 else d}")
        for tile in (3, 4):
            d = v(D+16*tile, 16)
            c = d if t > 0 else ('0' if tile == 3 else v(V_ONES, 16))
            L.append(f"v_mfma_f32_32x32x16_bf16 {d}, {xf}, {a(wf(tile,t),4)}, {c}")
    return L

def prod_post(b):
    D = DSET[b % 2]
    L = []
    if b < 3: L.append(f"v_add_u32 v{V_LW}, s{S_LO+b}, v{V_L16}")
    srcs = [D+16+8, D+32, D+40, D+48, D+56, D+64, D+72]
    for c, sreg in enumerate(srcs):
        tmp = V_PK + 4*(c % 4)
        for j in range(4):
            L.append(f"v_cvt_pk_bf16_f32 v{tmp+j}, v{sreg+2*j}, v{sreg+2*j+1}")
        if b < 3: L.append(f"ds_write_b128 v{V_LW}, {v(tmp,4)} offset:{c*1024}")
        so = S_KO+b if c < 4 else S_KO2+b
        L.append(f"buffer_store_dwordx4 {v(tmp,4)}, v{V_L16}, s[{S_WS}:{S_WS+3}], s{so} offen offset:{(c%4)*1024} sc1")
    for r in range(0, 24, 2):
        L.append(f"v_pk_mul_f32 {v(D+r,2)}, {v(D+r,2)}, s[{S_SC}:{S_SC+1}]")
    for j in range(12):
        L.append(f"v_cvt_pk_bf16_f32 v{Q(b)+j}, v{D+2*j}, v{D+2*j+1}")
    return L

def interleave(mf, fill, start=8, per=4):
    out = []
    fill = list(fill)
    for i, m in enumerate(mf):
        out.append(m)
        if i >= start:
            for k in range(per):
                if fill: out.append(fill.pop(0))
    out.extend(fill)
    return out

def production():
    mark = len(P.L)
    P("s_waitcnt vmcnt(18)")
    P.ext(prod_mfmas(0))
    P("s_waitcnt vmcnt(12)")
    P.ext(interleave(prod_mfmas(1), prod_post(0)))
    P("s_waitcnt vmcnt(13)")
    P.ext(interleave(prod_mfmas(2), prod_post(1)))
    lines_common = P.L[mark:]
    P(f"s_cmp_eq_u32 s{S_TYPE}, 0")
    P("s_cbranch_scc1 L_prodV")
    m2 = len(P.L)
    P("s_waitcnt vmcnt(14)")
    P.ext(interleave(prod_mfmas(3), prod_post(2)))
    P("s_nop 7\ns_nop 7")
    P.ext(prod_post(3))
    hl = P.L[m2:]
    P("s_branch L_proddone")
    P("L_prodV:")
    m3 = len(P.L)
    P("s_nop 7\ns_nop 7")
    P.ext(prod_post(2))
    vl = P.L[m3:]
    P("L_proddone:")
    pre = ["s_waitcnt vmcnt(24)"]
    xl = [f"buffer_load_dwordx4 {a(A_XF+24*b+4*t,4)}, v{V_X}, s[16:19], s68 offen" for b in range(4) for t in range(6)]
    section_check(xl + lines_common + hl, "prodH")
    section_check(xl + lines_common + vl, "prodV")

def poll(label, addr_v, cond_lines):
    P(f"s_mov_b32 s{S_CNT}, 0x100000")
    P(f"{label}:")
    P(f"global_load_dword v{V_TMP}, v{addr_v}, s[{S_DBG}:{S_DBG+1}] sc1")
    P("s_waitcnt vmcnt(0)")
    P(cond_lines)
    P(f"s_cbranch_scc1 {label}_ok")
    P(f"s_sub_u32 s{S_CNT}, s{S_CNT}, 1")
    P(f"s_cmp_lg_u32 s{S_CNT}, 0")
    P(f"s_cbranch_scc1 {label}")
    P(f"{label}_ok:")

def signal(value_expr, idx_sgpr, lbl):
    P(f"""
    s_cmp_eq_u32 s{S_WAVE}, 0
    s_cbranch_scc0 {lbl}
    s_lshl_b32 s{S_A}, s{idx_sgpr}, 2
    v_mov_b32 v{V_TMP}, s{S_A}
    v_mov_b32 v{V_TMP+1}, {value_expr}
    s_mov_b64 s[{S_MASK}:{S_MASK+1}], exec
    s_mov_b64 exec, 1
    global_atomic_add v{V_TMP}, v{V_TMP+1}, s[{S_DBG}:{S_DBG+1}] sc1
    s_mov_b64 exec, s[{S_MASK}:{S_MASK+1}]
    {lbl}:
    """)

def handoff():
    P("s_waitcnt vmcnt(0) lgkmcnt(0)")
    P("s_barrier")
    signal("1", S_CL, "L_sig1")
    P(f"""
    s_lshl_b32 s{S_A}, s{S_CL}, 2
    v_mov_b32 v{V_TMP+2}, s{S_A}
    s_sub_u32 s{S_B}, 5, s{S_TYPE}
    """)
    poll("L_poll1", V_TMP+2, f"v_readfirstlane_b32 s{S_A}, v{V_TMP}\ns_nop 3\ns_and_b32 s{S_A}, s{S_A}, 0xff\ns_cmp_ge_u32 s{S_A}, s{S_B}")

def attn_setup():
    P(f"""
    s_mul_i32 s{S_A}, s{S_CL}, {56*TILE}
    s_add_u32 s{S_GEND}, s{S_A}, {56*TILE}
    s_add_u32 s{S_B}, s{S_START}, s{S_WAVE}
    s_add_u32 s{S_B}, s{S_B}, 8
    s_cmp_ge_u32 s{S_B}, 56
    s_cselect_b32 s{S_C}, 56, 0
    s_sub_u32 s{S_B}, s{S_B}, s{S_C}
    s_mul_i32 s{S_B}, s{S_B}, {TILE}
    s_add_u32 s{S_GOFF}, s{S_A}, s{S_B}
    s_mul_i32 s{S_LBASE}, s{S_WAVE}, {TILE}
    """)
    P.ext(dma_advance())
    P.ext(dma_tile(None, 3*STAGE))
    P(f"""
    s_and_b32 s{S_A}, s{S_WAVE}, 1
    s_mul_i32 s{S_A}, s{S_A}, s{S_TYPE}
    """)
    for p in range(4):
        P(f"""
        s_add_u32 s{S_B}, s{S_A}, {p}
        s_and_b32 s{S_B}, s{S_B}, 3
        s_mul_i32 s{S_B}, s{S_B}, {TILE}
        v_add_u32 v{V_AP+p}, s{S_B}, v{V_L16}
        """)
    P(f"""
    s_mov_b32 s{S_DELTA}, {DSLOT}
    s_mov_b32 s{S_IT}, 0
    """)

def main_loops():
    P(f"s_cmp_eq_u32 s{S_TYPE}, 0")
    P("s_cbranch_scc1 L_startV")
    for typ in "HV":
        r = build(typ, typ)
        if typ == 'V': P("L_startV:")
        P.ext(r['pre'])
        P(".p2align 6")
        P(f"L_loop_{typ}:")
        P.ext(r['body']); P.ext(r['tail']); P.ext(r['post'])
        P(f"s_branch L_epi{typ}")
        section_check(r['pre'] + r['body'] + r['tail'][:-1] + r['body'] + r['post'], "loop" + typ)

def normalize(q, dst):
    o = O(q)
    L = [f"v_rcp_f32 v{V_TMP}, v{o+24}", "s_nop 0"]
    for r in range(0, 24, 2):
        L.append(f"v_pk_mul_f32 {v(o+r,2)}, {v(o+r,2)}, {v(V_TMP,2)} op_sel_hi:[1,0]")
    for j in range(12):
        L.append(f"v_cvt_pk_bf16_f32 v{dst+j}, v{o+2*j}, v{o+2*j+1}")
    return L

def epilogue_V():
    P("L_epiV:")
    mark = len(P.L)
    for q in range(3):
        dst = V_S + 12*q
        P.ext(normalize(q, dst))
        for t in range(3):
            P(f"buffer_store_dwordx4 {v(dst+4*t,4)}, v{V_L16}, s[{S_WS}:{S_WS+3}], s{S_OVO+q} offen offset:{t*1024} sc1")
    P("s_waitcnt vmcnt(0)")
    P("s_barrier")
    section_check(P.L[mark:], "epiV")
    signal("0x100", S_CL, "L_sig2")
    P("s_branch L_exit")

def epilogue_H():
    P("L_epiH:")
    mark = len(P.L)
    P(f"""
    s_waitcnt vmcnt(0)
    s_mul_i32 s{S_A}, s{S_WAVE}, {5*1024}
    s_add_u32 m0, s{S_A}, {WOIMG}
    s_nop 0
    """)
    for c in range(4):
        P(f"buffer_load_dwordx4 v{V_L16}, s[{S_WO}:{S_WO+3}], s{S_A} offen offset:{c*1024} lds")
    P(f"s_add_u32 s{S_A}, s{S_A}, 4096\ns_add_u32 m0, s{S_A}, {WOIMG}\ns_nop 0")
    P(f"buffer_load_dwordx4 v{V_L16}, s[{S_WO}:{S_WO+3}], s{S_A} offen lds")
    P("s_barrier")
    P(f"""
    s_lshr_b32 s{S_A}, s{S_WAVE}, 1
    s_mul_i32 s{S_A}, s{S_A}, {TILE}
    v_add_u32 v{V_LW}, s{S_A}, v{V_L16}
    s_and_b32 s{S_B}, s{S_WAVE}, 1
    s_cmp_eq_u32 s{S_B}, 0
    s_cbranch_scc1 L_xw_skip
    """)
    for c in range(7):
        P(f"ds_write_b128 v{V_LW}, {v(O(3)+4*c,4)} offset:{c*1024}")
    P("L_xw_skip:")
    P("s_waitcnt vmcnt(0) lgkmcnt(0)")
    P("s_barrier")
    P(f"s_cmp_eq_u32 s{S_B}, 0")
    P("s_cbranch_scc0 L_xr_skip")
    for c in range(7):
        P(f"ds_read_b128 {v(V_S+4*c,4)}, v{V_LW} offset:{c*1024}")
    P("s_waitcnt lgkmcnt(0)")
    for r in range(28):
        P(f"v_add_f32 v{O(3)+r}, v{O(3)+r}, v{V_S+r}")
    P("L_xr_skip:")
    P(f"""
    v_lshrrev_b32 v{V_TMP+1}, 4, v{V_L16}
    v_lshrrev_b32 v{V_TMP+2}, 5, v{V_TMP+1}
    v_lshlrev_b32 v{V_TMP+2}, 2, v{V_TMP+2}
    v_and_b32 v{V_TMP+3}, 15, v{V_TMP+1}
    v_lshrrev_b32 v{V_TMP+3}, 2, v{V_TMP+3}
    v_add_u32 v{V_TMP+2}, v{V_TMP+2}, v{V_TMP+3}
    v_mul_u32_u24 v{V_W0}, 192, v{V_TMP+2}
    v_lshrrev_b32 v{V_TMP+2}, 4, v{V_TMP+1}
    v_and_b32 v{V_TMP+2}, 1, v{V_TMP+2}
    v_lshlrev_b32 v{V_TMP+2}, 5, v{V_TMP+2}
    v_add_u32 v{V_W0}, v{V_W0}, v{V_TMP+2}
    v_and_b32 v{V_TMP+3}, 3, v{V_TMP+1}
    v_lshlrev_b32 v{V_TMP+3}, 3, v{V_TMP+3}
    v_add_u32 v{V_W0}, v{V_W0}, v{V_TMP+3}
    v_add_u32 v{V_W0}, {WOIMG}, v{V_W0}
    """)
    AWO = 64
    for m in range(3):
        for t in range(6):
            for jj in range(2):
                off = (16*t + 8*jj)*192 + 64*m
                P(f"ds_read_b64_tr_b16 {a(AWO+(m*6+t)*4+2*jj,2)}, v{V_W0} offset:{off}")
    section_check(P.L[mark:], "epiH1")
    P(f"""
    s_mul_i32 s{S_A}, s{S_J}, 7
    v_lshrrev_b32 v{V_TMP+2}, 4, v{V_L16}
    v_min_u32 v{V_TMP+2}, 6, v{V_TMP+2}
    v_add_u32 v{V_TMP+2}, s{S_A}, v{V_TMP+2}
    v_lshlrev_b32 v{V_TMP+2}, 2, v{V_TMP+2}
    """)
    poll("L_poll2", V_TMP+2, f"v_bfe_u32 v{V_TMP}, v{V_TMP}, 8, 8\nv_cmp_ne_u32 vcc, 5, v{V_TMP}\ns_nop 3\ns_cmp_eq_u64 vcc, 0")
    mark = len(P.L)
    AOV = 140
    for q in range(4):
        for t in range(3):
            P(f"buffer_load_dwordx4 {a(AOV+12*q+4*t,4)}, v{V_L16}, s[{S_WS}:{S_WS+3}], s{S_OVO+q} offen offset:{t*1024} sc1")
    P("s_waitcnt lgkmcnt(0)")
    def tile_out(q):
        L = []
        oh = V_S
        L += normalize(q, oh)
        L.append(f"s_waitcnt vmcnt({9 - 3*q + 6*q})")
        D = V_Q
        for t in range(6):
            for m in range(3):
                bsrc = v(oh+4*t, 4) if t < 3 else a(AOV+12*q+4*(t-3), 4)
                d = v(D+16*m, 16)
                L.append(f"v_mfma_f32_32x32x16_bf16 {d}, {a(AWO+(m*6+t)*4,4)}, {bsrc}, {'0' if t == 0 else d}")
        L.append("s_nop 7"); L.append("s_nop 7")
        for m in range(3):
            for pr in range(2):
                tmp = V_P + 4*((2*m+pr) % 4)
                for j in range(4):
                    L.append(f"v_cvt_pk_bf16_f32 v{tmp+j}, v{D+16*m+8*pr+2*j}, v{D+16*m+8*pr+2*j+1}")
                L.append("s_nop 1")
                L.append(f"v_permlane32_swap_b32 v{tmp}, v{tmp+2}")
                L.append(f"v_permlane32_swap_b32 v{tmp+1}, v{tmp+3}")
                L.append(f"buffer_store_dwordx4 {v(tmp,4)}, v{V_X}, s[{S_OUT}:{S_OUT+3}], s{S_XO+q} offen offset:{64*m+32*pr}")
        return L
    for q in range(3): P.ext(tile_out(q))
    P(f"s_and_b32 s{S_B}, s{S_WAVE}, 1\ns_cmp_eq_u32 s{S_B}, 0\ns_cbranch_scc0 L_exit")
    P.ext(tile_out(3))
    section_check(P.L[mark:], "epiH2")

prologue()
production()
if STOP == "prod":
    P("s_waitcnt vmcnt(0) lgkmcnt(0)")
    P(f"s_lshl_b32 s{S_A}, s{S_WGID}, 2\ns_add_u32 s{S_A}, s{S_A}, s{S_WAVE}\ns_mul_i32 s{S_A}, s{S_A}, {9216}")
    for r in range(12):
        P(f"buffer_store_dwordx4 {v(V_Q+4*r,4)}, v{V_L16}, s[{S_OUT}:{S_OUT+3}], s{S_A} offen offset:{(r%3)*1024}")
        if r % 3 == 2: P(f"s_add_u32 s{S_A}, s{S_A}, 3072")
    P("s_branch L_exit")
else:
    handoff()
    attn_setup()
    P("s_waitcnt vmcnt(0) lgkmcnt(0)")
    P("s_barrier")
    main_loops()
    epilogue_V()
    epilogue_H()
P("L_exit:")
P("s_endpgm")

if CHK:
    print("\n".join(CHK[:40])); print(len(CHK), "problems"); sys.exit(1)
hdr = open("standalone__window_attn_cswin__vision.s.ref").read().split("; Override launch")[0]
src = hdr + f"; @launch grid=(256,1,1) block=(256,1,1) lds={LDSBYTES}\n" + '.amdgcn_target "amdgcn-amd-amdhsa--gfx950"\n.text\n' + kernel_header(NAME) + P.text() + kernel_footer(NAME, 512, 256, 100, 48)
out = os.environ.get("OUT", "kernel.s")
open(out, "w").write(src)
print("written", out, len(P.L), "lines")
```

```python
import re

def v(a, n=1): return f"v{a}" if n == 1 else f"v[{a}:{a+n-1}]"
def a(x, n=1): return f"a{x}" if n == 1 else f"a[{x}:{x+n-1}]"
def s(x, n=1): return f"s{x}" if n == 1 else f"s[{x}:{x+n-1}]"

class Prog:
    def __init__(self):
        self.L = []
    def __call__(self, t):
        for line in t.split("\n"):
            line = line.strip()
            if line: self.L.append(line)
    def ext(self, lines):
        for l in lines: self(l)
    def text(self):
        out = []
        for l in self.L:
            if l.endswith(":") or l.startswith("."): out.append(l)
            else: out.append("  " + l)
        return "\n".join(out) + "\n"

REG = re.compile(r"\b([vas])(\d+)\b|\b([vas])\[(\d+):(\d+)\]")
def regs(tok):
    out = set()
    for m in REG.finditer(tok):
        if m.group(1): out.add((m.group(1), int(m.group(2))))
        else:
            for i in range(int(m.group(4)), int(m.group(5)) + 1): out.add((m.group(3), i))
    for sp in ("vcc", "exec", "m0", "scc"):
        if re.search(r"\b%s(_lo|_hi)?\b" % sp, tok): out.add((sp, 0))
    return out

TRANS = ("v_exp_f32", "v_log_f32", "v_rcp_f32", "v_rsq_f32", "v_sqrt_f32", "v_sin_f32", "v_cos_f32", "v_rcp_iflag_f32", "v_exp_f16", "v_rcp_f16")

class Ins:
    def __init__(self, text):
        self.text = text
        t = text.split(";")[0].strip()
        self.t = t
        parts = t.split(None, 1)
        self.op = parts[0]
        ops = [o.strip() for o in parts[1].split(",")] if len(parts) > 1 else []
        self.ops = ops
        op = self.op
        self.kind = "other"
        self.w = set(); self.r = set()
        self.srcC = set(); self.srcAB = set()
        if op.startswith("v_mfma"):
            self.kind = "mfma"
            self.w = regs(ops[0]); self.srcAB = regs(ops[1]) | regs(ops[2]); self.srcC = regs(ops[3])
            self.r = self.srcAB | self.srcC
            self.passes = 8 if "32x32" in op else 4
        elif op.startswith("v_cmp"):
            self.kind = "valu"
            self.w = regs(ops[0]); self.r = set().union(*[regs(o) for o in ops[1:]])
            if op.startswith("v_cmpx"): self.w.add(("exec", 0))
        elif op in ("v_readfirstlane_b32", "v_readlane_b32"):
            self.kind = "valu"
            self.w = regs(ops[0]); self.r = set().union(*[regs(o) for o in ops[1:]])
        elif op.startswith("v_permlane") or op.startswith("v_swap"):
            self.kind = "valu"
            self.w = regs(ops[0]) | regs(ops[1]); self.r = set(self.w)
        elif op.startswith("v_"):
            self.kind = "valu"
            self.w = regs(ops[0]);
            rest = ops[1:]
            if op in ("v_add_co_u32", "v_sub_co_u32", "v_addc_co_u32", "v_subb_co_u32", "v_div_scale_f32", "v_mad_u64_u32"):
                self.w |= regs(ops[1]); rest = ops[2:]
            self.r = set().union(*[regs(o) for o in rest]) if rest else set()
            if op.startswith(("v_fmac", "v_mac", "v_pk_fmac", "v_dot2c", "v_writelane")) or "UNUSED_PRESERVE" in t or op.startswith(("v_fma_mixhi", "v_fma_mixlo")):
                self.r |= regs(ops[0])
            if op.startswith("v_cndmask_b32") and len(ops) == 3: self.r.add(("vcc", 0))
        elif op.startswith("ds_read") or op.startswith("ds_bpermute") or op.startswith("ds_swizzle") or op.startswith("ds_permute"):
            self.kind = "dsread"
            self.w = regs(ops[0]); self.r = set().union(*[regs(o.split()[0]) for o in ops[1:]])
        elif op.startswith("ds_"):
            self.kind = "dswrite"
            self.r = set().union(*[regs(o.split()[0]) for o in ops])
        elif op.startswith("buffer_load") or op.startswith("global_load"):
            lds = bool(re.search(r"\blds\b", t))
            if lds:
                self.kind = "dma"
                self.r = set().union(*[regs(o.split()[0]) for o in ops]) | {("m0", 0)}
            else:
                self.kind = "vload"
                self.w = regs(ops[0]); self.r = set().union(*[regs(o.split()[0]) for o in ops[1:]])
        elif op.startswith("buffer_store") or op.startswith("global_store"):
            self.kind = "vstore"
            self.r = set().union(*[regs(o.split()[0]) for o in ops])
            if op.startswith("buffer_store"): self.data = regs(ops[0])
            else: self.data = regs(ops[1])
            self.wide = ("x3" in op or "x4" in op)
        elif op.startswith("buffer_atomic") or op.startswith("global_atomic"):
            self.kind = "vatomic"
            self.r = set().union(*[regs(o.split()[0]) for o in ops])
            if re.search(r"\bsc0\b", t): self.w = regs(ops[0])
        elif op in ("buffer_wbl2", "buffer_inv"):
            self.kind = "dma"
        elif op.startswith("s_load") or op.startswith("s_memtime") or op.startswith("s_memrealtime"):
            self.kind = "smem"
            self.w = regs(ops[0]); self.r = set().union(*[regs(o) for o in ops[1:]]) if len(ops) > 1 else set()
        elif op == "s_waitcnt":
            self.kind = "wait"
            m = re.search(r"vmcnt\((\d+)\)", t); self.vm = int(m.group(1)) if m else None
            m = re.search(r"lgkmcnt\((\d+)\)", t); self.lgkm = int(m.group(1)) if m else None
        elif op == "s_nop":
            self.kind = "nop"; self.n = int(ops[0], 0) + 1
        elif op.startswith("s_cbranch") or op == "s_branch":
            self.kind = "branch"
        elif op in ("s_barrier", "s_endpgm", "s_setprio", "s_sleep"):
            self.kind = "sctl"
        elif op.startswith("s_getreg"):
            self.kind = "salu"; self.w = regs(ops[0])
        elif op.startswith("s_cmp"):
            self.kind = "salu"; self.r = set().union(*[regs(o) for o in ops]); self.w = {("scc", 0)}
        elif op.startswith("s_"):
            self.kind = "salu"
            self.w = regs(ops[0]); self.r = set().union(*[regs(o) for o in ops[1:]]) if len(ops) > 1 else set()
            if op.startswith(("s_and_saveexec", "s_or_saveexec")): self.w.add(("exec", 0))
        else:
            raise ValueError("unknown instr: " + text)
    def ws(self):
        return self.n if self.kind == "nop" else 1

def check_linear(lines, name="", verbose=True):
    ins = []
    for l in lines:
        l = l.strip()
        if not l or l.endswith(":") or l.startswith(".") or l.startswith(";"): continue
        ins.append(Ins(l))
    probs = []
    n = len(ins)
    pre = [0]
    for x in ins: pre.append(pre[-1] + x.ws())
    def dist(i, j): return pre[j] - pre[i + 1]
    W = 24
    for j, c in enumerate(ins):
        i = j - 1
        while i >= 0 and dist(i, j) < W:
            p = ins[i]; d = dist(i, j)
            def bad(need, why):
                if d < need: probs.append(f"{name}: [{why}] need {need} got {d}: '{p.t}' -> '{c.t}'")
            vw = {x for x in p.w if x[0] in "va"}
            if p.kind == "valu":
                if c.kind == "mfma" and (vw & c.r): bad(2, "valu->mfma")
                if p.op in TRANS and c.kind == "valu" and (vw & c.r): bad(1, "trans->valu")
                if p.op in TRANS and c.kind in ("vstore", "dswrite") and (vw & c.r): bad(1, "trans->mem?")
                if c.op.startswith("v_permlane") and (vw & c.r): bad(2, "valu->permlane")
                if c.op in ("v_readfirstlane_b32", "v_readlane_b32") and (vw & c.r): bad(1, "valu->readlane")
                sw = {x for x in p.w if x[0] in ("s", "vcc")}
                if sw:
                    if c.kind in ("vload", "vstore", "dma", "vatomic") and (sw & c.r): bad(5, "valu sgpr->vmem")
                    if c.kind == "valu" and (sw & c.r): bad(2, "valu sgpr->valu const")
                    if c.kind == "salu" and (sw & c.r): bad(1, "valu sgpr->salu (pad)")
                if ("exec", 0) in p.w and c.kind in ("valu", "mfma"): bad(4, "valu exec->")
                if "dpp" in c.t and (vw & c.r): bad(2, "valu->dpp")
                if "_sdwa" in p.op and c.kind == "valu" and (vw & (c.r | c.w)): bad(1, "sdwa->valu")
            if p.kind == "mfma":
                D = p.w
                big = 12 if p.passes == 8 else 8
                if c.kind == "mfma":
                    if D & c.srcAB: bad(big, "mfma D->mfma AB")
                    if D & c.srcC:
                        if not (c.srcC == D and c.passes == p.passes): bad(10 if p.passes == 8 else 6, "mfma D->mfma C overlap")
                    elif (D & c.w):
                        bad(big, "mfma D->mfma D WAW (new C)")
                elif c.kind in ("valu",):
                    if D & (c.r | c.w): bad(big, "mfma D->valu")
                    if p.srcC & c.w and not (D & c.w): bad(7 if p.passes == 8 else 3, "mfma C WAR valu")
                elif c.kind in ("vstore", "dswrite", "vatomic", "dma"):
                    if D & c.r: bad(big, "mfma D->mem read")
                elif c.kind in ("dsread", "vload"):
                    if D & (c.r | c.w): bad(big, "mfma D->load")
            if p.kind == "salu" and ("m0", 0) in p.w and c.kind == "dma": bad(1, "m0->dma")
            if p.kind == "vstore" and p.wide:
                if c.kind == "valu" and (p.data & c.w): bad(2, "store data WAR valu")
                elif c.kind in ("dsread", "vload", "mfma") and (p.data & c.w): bad(1, "store data WAR")
            i -= 1
    vmq = []; lq = []
    smem_out = []
    for j, c in enumerate(ins):
        if c.kind == "wait":
            if c.vm is not None:
                while len(vmq) > c.vm: vmq.pop(0)
            if c.lgkm is not None:
                if c.lgkm == 0: lq = []
                else:
                    if any(k == "smem" for (_, _, k) in lq): probs.append(f"{name}: counted lgkmcnt with smem outstanding at '{c.t}' idx {j}")
                    while len(lq) > c.lgkm: lq.pop(0)
            continue
        touched = (c.r | c.w)
        for (i, d) in vmq:
            if d & touched and not (c.kind in ("vload",) and not (d & c.r)):
                probs.append(f"{name}: vmcnt: '{c.t}' touches pending load '{ins[i].t}'")
        for (i, d, k) in lq:
            if d & touched and not (c.kind == "dsread" and not (d & c.r)):
                probs.append(f"{name}: lgkmcnt: '{c.t}' touches pending '{ins[i].t}'")
        if c.kind in ("vload", "vatomic"): vmq.append((j, set(c.w)))
        elif c.kind in ("vstore", "dma"): vmq.append((j, set()))
        elif c.kind == "dsread": lq.append((j, set(c.w), "ds"))
        elif c.kind == "dswrite": lq.append((j, set(), "ds"))
        elif c.kind == "smem": lq.append((j, set(c.w), "smem"))
        if len(vmq) > 63: probs.append(f"{name}: vmcnt overflow at '{c.t}'")
    return probs
```

```python
from lib import *

TILE = 7168
STAGE = 4 * TILE
DSLOT = 2 * STAGE
RING = 4 * STAGE
import os
NSTAGE = int(os.environ.get('NSTAGE', 14))

V_TID = 0
V_L16 = 1
V_AP = 2
V_T = 6
V_O = 16
V_S = 144
V_E = 176
V_P = 192
V_Q = 208
A_K = 0
A_V = 24
S_WS = 8
S_DM = 12
S_GOFF = 20
S_GEND = 21
S_LBASE = 22
S_DELTA = 23
S_IT = 24
S_TMP = 25
S_TMP2 = 26
S_NREC = 27
S_GOFF2 = 28

def O(q): return V_O + 32 * q
def S(b): return V_S + 16 * b
def P(b): return V_P + 8 * b
def Q(q): return V_Q + 12 * q
def K(b): return A_K + 12 * b
def V(b): return A_V + 16 * b

def mf_S(u, sb, t):
    q, g = u
    c = "0" if t == 0 else v(S(sb), 16)
    return f"v_mfma_f32_32x32x16_bf16 {v(S(sb),16)}, {a(K(g%2)+4*t,4)}, {v(Q(q)+4*t,4)}, {c}"
def mf_PV(u, pb, k):
    q, g = u
    m, st = [(0,0),(1,0),(0,1),(1,1)][k]
    d = O(q) + 16*m
    return f"v_mfma_f32_32x32x16_bf16 {v(d,16)}, {a(V(g%2)+8*m+4*st,4)}, {v(P(pb)+4*st,4)}, {v(d,16)}"

from functools import lru_cache
COST = dict(ds=8, dma=13, salu=4, wait=4, bar=4)
def extra_cost(items):
    t = 0; first = True
    for x in items:
        if x.startswith("v_"): c = 4
        elif x.startswith("ds_"): c = COST['ds']
        elif x.startswith("buffer_load"): c = COST['dma']
        else: c = 4
        if first and not x.startswith("v_"): c -= 4
        first = False
        t += c
    return t

def plan_gaps(ex_costs):
    INF = 10**9
    @lru_cache(None)
    def go(i, e, c, d):
        if i == 7:
            return (0, ()) if (e == 16 and c == 6 and d == 2) else (INF, ())
        best = (INF, ())
        for nd in range(0, 2 - d + 1):
            if i >= 2 and d + nd < 2: continue
            for ne in range(0, min(4, 16 - e) + 1):
                cmax = min(6, e // 2)
                for nc in range(0, cmax - c + 1):
                    if nc > 4: break
                    t = 8 + ex_costs[i] + 8 * ne + 4 * (nc + nd)
                    cost = max(32, t)
                    sub = go(i + 1, e + ne, c + nc, d + nd)
                    tot = cost + sub[0]
                    if tot < best[0]: best = (tot, ((ne, nc, nd),) + sub[1])
        return best
    r = go(0, 0, 0, 0)
    return r

_pg = {}
def plan_gaps_c(costs):
    if costs not in _pg:
        global _costs
        plan_gaps.__wrapped__ if False else None
        _pg[costs] = plan_gaps(list(costs))
    return _pg[costs]

def valu_gaps(b, plan):
    e = c = 0; d = 6
    out = []
    for (ne, nc, nd) in plan:
        l = []
        es = [f"v_exp_f32 {v(V_E+e+k)}, {v(S(b)+e+k)}" for k in range(ne)]; e += ne
        cs = [f"v_cvt_pk_bf16_f32 {v(P(1-b)+d+k)}, {v(V_E+2*(d+k))}, {v(V_E+2*(d+k)+1)}" for k in range(nd)]; d += nd
        cs += [f"v_cvt_pk_bf16_f32 {v(P(b)+c+k)}, {v(V_E+2*(c+k))}, {v(V_E+2*(c+k)+1)}" for k in range(nc)]; c += nc
        out.append(es + cs)
    assert e == 16 and c == 6 and d == 8
    return out

def stage_units(typ):
    u = []
    for p in range(4):
        qs = [0, 1, 2] + ([3] if (typ == 'H' and p % 2 == 1) else [])
        for q in qs: u.append((q, p))
    return u

def dma_tile(ldsexpr_base, sb_off):
    L = []
    L.append(f"s_add_u32 m0, s{S_LBASE}, {sb_off}")
    for c in range(4):
        L.append(f"buffer_load_dwordx4 v{V_L16}, s[{S_DM}:{S_DM+3}], s{S_GOFF} offen offset:{c*1024} lds")
    L.append(f"s_add_u32 m0, s{S_LBASE}, {sb_off + 4096}")
    for c in range(3):
        L.append(f"buffer_load_dwordx4 v{V_L16}, s[{S_DM}:{S_DM+3}], s{S_GOFF2} offen offset:{c*1024} lds")
    return L
def dma_advance():
    return [f"s_add_u32 s{S_GOFF}, s{S_GOFF}, {STAGE}",
            f"s_cmp_ge_u32 s{S_GOFF}, s{S_GEND}",
            f"s_cselect_b32 s{S_TMP}, {56*TILE}, 0",
            f"s_sub_u32 s{S_GOFF}, s{S_GOFF}, s{S_TMP}",
            f"s_add_u32 s{S_GOFF2}, s{S_GOFF}, 4096"]

def reads_K(g):
    sb, p = (g // 4) % 2, g % 4
    return [("ds", ('K', g % 8), f"ds_read_b128 {a(K(g%2)+4*t,4)}, v{V_AP+p} offset:{sb*STAGE + t*1024}") for t in range(3)]
def reads_V(g):
    sb, p = (g // 4) % 2, g % 4
    return [("ds", ('V', g % 8), f"ds_read_b128 {a(V(g%2)+4*c,4)}, v{V_AP+p} offset:{sb*STAGE + (3+c)*1024}") for c in range(4)]

def build(typ, tag, variant="steady", hooks=None):
    hooks = hooks or {}
    su = stage_units(typ)
    ns = len(su)
    N = 2 * ns
    U = [(q, 4*sb + p) for sb in range(2) for (q, p) in su]
    first = {}; last = {}
    for i, (q, g) in enumerate(U):
        first.setdefault(g, i); last[g] = i
    firstS = {g: first[g] - 1 for g in first}; lastS = {g: last[g] - 1 for g in first}
    firstPV = {g: first[g] + 1 for g in first}; lastPV = {g: last[g] + 1 for g in first}
    extras = [[] for _ in range(N)]
    pinned = {}
    def pin(slot, sh, item): pinned.setdefault((slot % N, sh), []).append(item)
    rV3 = lastPV[1] + 1
    B = rV3 + 2
    rK = {}; rV = {}
    for g in range(8):
        k = lastS[(g - 2) % 8] + 1 - (N if g < 2 else 0)
        vv = lastPV[(g - 2) % 8] + 1 - (N if g < 2 else 0)
        st = g // 4
        bar_prev = (st - 1) * ns + B
        k = max(k, bar_prev); vv = max(vv, bar_prev + 1)
        if g % 4 == 0:
            k = max(k, firstS[g] - 2); vv = max(vv, firstPV[g] - 1)
        if g % 4 == 1:
            k = max(k, firstS[g] - 2)
        assert k <= firstS[g] - 2, (typ, g, k, firstS[g])
        assert vv <= firstPV[g] - 1, (typ, g, vv, firstPV[g])
        rK[g] = k; rV[g] = vv
    for g in range(8):
        st = g // 4
        assert rK[g] <= st * ns + B - 2 and rV[g] <= st * ns + B - 2, (typ, g, rK[g], rV[g], B)
    for sb in range(2):
        sl = sb * ns + B
        hk = hooks.get(f"bar{sb}")
        if hk:
            pin(sl, 0, ("raw", None, hk[0]))
            pin(sl, 1, ("raw", None, "s_barrier"))
            for x in hk[1]: pin(sl, 1, ("raw", None, x))
        else:
            pin(sl, 0, ("raw", None, "s_waitcnt vmcnt(0) lgkmcnt(0)"))
            pin(sl, 1, ("raw", None, "s_barrier"))
    for (sl, sh), lines in hooks.get('ins', {}).items():
        for x in lines: pin(sl, sh, ("raw", None, x))
    tmp = [[] for _ in range(N)]
    for g in range(8):
        tmp[rK[g] % N].append((firstS[g] - rK[g] - 0.5, reads_K(g)))
        tmp[rV[g] % N].append((firstPV[g] - rV[g], reads_V(g)))
    for i in range(N):
        for _, rd in sorted(tmp[i], key=lambda x: x[0]):
            extras[i].extend(rd)
    chains = {}
    for sb in range(2):
        if variant == "steady" or sb == 1:
            chains[(sb * ns + B) % N] = dma_tile(None, sb * STAGE)
            chains[(sb * ns + 2) % N] = dma_advance()
    for sl, lines in hooks.get('chain', {}).items():
        assert sl not in chains
        chains[sl] = list(lines)
    for g in range(8):
        pin(firstS[g] - 1, 6, ("wait", ('K', g), None))
        pin(firstPV[g], 0, ("wait", ('V', g), None))
    toggles = {}
    for p in range(4):
        sl = rV[4 + p]
        assert rK[p] + N > sl
        toggles.setdefault(sl % N, []).append(f"v_add_u32 v{V_AP+p}, s{S_DELTA}, v{V_AP+p}")
    items = []
    chain = []
    est_total = 0
    seenq = set()
    for i in range(N):
        un = U[(i + 1) % N]; up = U[(i - 1) % N]
        sS = [mf_S(un, (i + 1) % 2, t) for t in range(3)]; sP = [mf_PV(up, (i - 1) % 2, k) for k in range(4)]
        if variant == "first":
            if i == 0: sP = [None] * 4
            elif up[0] not in seenq:
                seenq.add(up[0])
                for k in (0, 1):
                    sP[k] = sP[k].rsplit(",", 1)[0] + ", 0"
        mf = [sS[0], sP[0], sS[1], sP[1], sS[2], sP[2], sP[3]]
        ex = list(extras[i])
        sh = [[] for _ in range(7)]
        for m in range(7):
            pp = pinned.get((i, m), [])
            for it in pp: sh[m].append(it)
            if m == 2 and i in chains:
                chain = chain + list(chains[i])
            if not pp:
                if ex: sh[m].append(ex.pop(0))
                elif chain:
                    x = chain.pop(0); sh[m].append(("raw", None, x))
                    if x.startswith("s_cmp"):
                        sh[m].append(("raw", None, chain.pop(0)))
        assert not ex, (typ, i, ex)
        tg = toggles.get(i, [])
        costs = [min(40, extra_cost([(it[2] or "s_waitcnt") for it in sh[m] if not (it[2] or "x").endswith(":")])) for m in range(7)]
        costs[6] += 4 * len(tg)
        tot, plan = plan_gaps_c(tuple(costs))
        est_total += tot
        gaps = valu_gaps(i % 2, plan)
        for m in range(7):
            if mf[m]: items.append(("raw", None, mf[m]))
            for it in sh[m]: items.append(it)
            for x in gaps[m]: items.append(("raw", None, x))
            if m == 6:
                for x in tg: items.append(("raw", None, x))
    if variant == "steady": print(typ, "estimated cycles/unit", est_total / N)
    assert not chain, chain
    body = []
    for j, it in enumerate(items):
        if it[0] == "wait":
            tagk = (it[1][0], it[1][1] % 8)
            n = 0; found = False
            for step in range(1, len(items) + 1):
                k = j - step
                if k < 0:
                    if variant == "first": n = -1; found = True; break
                    k %= len(items)
                x = items[k]
                if x[0] == "ds":
                    if x[1] == tagk: found = True; break
                    n += 1
                elif x[0] == "raw" and x[2].startswith("ds_"):
                    n += 1
                elif x[0] == "raw" and "lgkmcnt(0)" in x[2]:
                    n = -1; found = True; break
            assert found
            if n >= 0:
                body.append(f"s_waitcnt lgkmcnt({min(n, 15)})")
                assert n <= 15 or True
            else:
                body.append("s_nop 0")
        else:
            body.append(it[2])
    tail = [f"s_sub_u32 s{S_LBASE}, s{S_LBASE}, s{S_DELTA}",
            f"s_sub_u32 s{S_DELTA}, 0, s{S_DELTA}",
            f"s_add_u32 s{S_IT}, s{S_IT}, 2",
            f"s_cmp_lt_u32 s{S_IT}, {NSTAGE - 2}",
            f"s_cselect_b32 s{S_DM+2}, s{S_NREC}, 0",
            f"s_cmp_lt_u32 s{S_IT}, {NSTAGE}",
            f"s_cbranch_scc1 L_loop_{tag}"]
    pre = []
    for it in reads_K(0): pre.append(it[2])
    pre.append("s_waitcnt lgkmcnt(0)")
    for t in range(3): pre.append(mf_S(U[0], 0, t))
    pre.append("s_nop 7"); pre.append("s_nop 7")
    bl = (N - 1) % 2
    post = [f"v_cvt_pk_bf16_f32 {v(P(bl)+d)}, {v(V_E+2*d)}, {v(V_E+2*d+1)}" for d in (6, 7)] + ["s_nop 1"]
    post += [mf_PV(U[N-1], (N - 1) % 2, k) for k in range(4)]
    return dict(pre=pre, body=body, tail=tail, post=post, N=N, B=B, U=U, ns=ns)
```

```python
import sys, os
from common import *
import mainloop as ML

XPOL = os.environ.get("XPOL", "")
NAME = "standalone__window_attn_cswin__vision_kernel"
STOP = os.environ.get("STOP", "")
TIMING = os.environ.get("TIMING", "")
PERMUTE = os.environ.get("PERMUTE", "")
XBYTES = 224*224*96*2
WBYTES = 96*288*2
WOBYTES = 96*96*2
KVBYTES = 56*56*TILE
OVBASE = 0x1600000
OVBYTES = 56*28*3072
WSBYTES = 0x1E00000
TMBASE = 0x1C00000
assert OVBASE >= KVBYTES
WIMG = 3*STAGE
PLANE = 9216
XCHG = RING
WOIMG = 163840 - WOBYTES
LDSBYTES = 163840
SCALE_HEX = 0x3e553b95

S_SC = 46
S_XO = 68
S_TB = 72
S_KO = 76
S_KO2 = 80
S_LO = 84
S_OVO = 88
S_MASK = 92
S_CNT = 94
S_EXP = 95
S_NCL = 29

A_XF = 160
A_WF = 40
A_WO = 64
A_OV = 140
V_X = 6; V_W0 = 7; V_W1 = 8; V_LW = 9
V_TMP = 10
V_POLL = 12
V_PADDR = 13
DSET = [16, 96]
V_ONES = 176
V_PK = 192

P = Prog()
CHK = []
NMARK = [0]
def mark_t(name, idx=None):
    if not TIMING: return []
    if idx is not None: NMARK[0] = idx
    i = NMARK[0]; NMARK[0] += 1
    print("mark", i, name)
    return ["s_memrealtime s[56:57]", "s_memtime s[58:59]", "s_waitcnt lgkmcnt(0)",
            f"v_writelane_b32 v14, s56, {i}", f"v_writelane_b32 v15, s58, {i}"]
def section_check(lines, name):
    CHK.extend(check_linear([l for l in lines], name))
def wf(tile, t): return A_WF + (tile*6 + t)*4

def lane_exec1(lines):
    return [f"s_mov_b64 s[{S_MASK}:{S_MASK+1}], exec", "s_mov_b64 exec, 1"] + lines + [f"s_mov_b64 exec, s[{S_MASK}:{S_MASK+1}]"]

def prologue():
    P(f"""
    s_load_dwordx4 s[4:7], s[0:1], 0
    s_load_dwordx4 s[60:63], s[0:1], 16
    s_load_dwordx4 s[64:67], s[0:1], 32
    v_lshrrev_b32 v{V_TMP}, 6, v0
    v_and_b32 v{V_TMP+1}, 63, v0
    v_lshlrev_b32 v{V_L16}, 4, v{V_TMP+1}
    v_readfirstlane_b32 s{S_WAVE}, v{V_TMP}
    """)
    if PERMUTE:
        P(f"s_cmp_ge_u32 s{S_WGID}, 256\ns_cbranch_scc1 L_exit")
        P(f"s_lshr_b32 s{S_A}, s{S_WGID}, 3\ns_lshl_b32 s{S_WGID}, s{S_WGID}, 5\ns_or_b32 s{S_WGID}, s{S_WGID}, s{S_A}\ns_and_b32 s{S_WGID}, s{S_WGID}, 255")
    role_decode(P, "L_exit")
    mark = len(P.L)
    P(f"""
    v_and_b32 v{V_TMP}, 31, v{V_TMP+1}
    v_lshrrev_b32 v{V_TMP+2}, 3, v{V_TMP}
    v_and_b32 v{V_TMP+3}, 7, v{V_TMP}
    v_mul_u32_u24 v{V_TMP+2}, {224*192}, v{V_TMP+2}
    v_mul_u32_u24 v{V_TMP+3}, 192, v{V_TMP+3}
    v_add_u32 v{V_X}, v{V_TMP+2}, v{V_TMP+3}
    v_lshrrev_b32 v{V_TMP+2}, 5, v{V_TMP+1}
    v_lshlrev_b32 v{V_TMP+3}, 4, v{V_TMP+2}
    v_add_u32 v{V_X}, v{V_X}, v{V_TMP+3}
    """)
    def geom(b):
        if b < 3:
            P(f"s_mul_i32 s{S_A}, s{S_WAVE}, 3\ns_add_u32 s{S_A}, s{S_A}, {b}")
            P(f"""
            s_lshr_b32 s{S_B}, s{S_A}, 2
            s_mul_i32 s{S_B}, s{S_B}, {STAGE}
            s_and_b32 s{S_C}, s{S_A}, 3
            s_mul_i32 s{S_C}, s{S_C}, {TILE}
            s_add_u32 s{S_LO+b}, s{S_B}, s{S_C}
            """)
        else:
            P(f"s_lshr_b32 s{S_A}, s{S_WAVE}, 1\ns_add_u32 s{S_A}, s{S_A}, 12")
        P(f"""
        s_add_u32 s{S_A}, s{S_A}, s{S_START}
        s_cmp_ge_u32 s{S_A}, 56
        s_cselect_b32 s{S_B}, 56, 0
        s_cselect_b32 s{S_D}, 1, 0
        s_sub_u32 s{S_TB+b}, s{S_A}, s{S_B}
        s_and_b32 s{S_A}, s{S_TB+b}, 1
        s_lshl_b32 s{S_B}, s{S_STRIPE}, 1
        s_add_u32 s{S_A}, s{S_A}, s{S_B}
        s_lshr_b32 s{S_B}, s{S_TB+b}, 1
        s_cmp_eq_u32 s{S_TYPE}, 0
        s_cselect_b32 s{S_A}, s{S_TB+b}, s{S_A}
        s_cselect_b32 s{S_B}, s{S_STRIPE}, s{S_B}
        s_mul_i32 s{S_C}, s{S_A}, {4*224*192}
        s_mul_i32 s{S_XO+b}, s{S_B}, {8*192}
        s_add_u32 s{S_XO+b}, s{S_XO+b}, s{S_C}
        """)
        def rest():
            P(f"""
            s_and_b32 s{S_A}, s{S_TB+b}, 1
            s_lshl_b32 s{S_B}, s{S_STRIPE}, 1
            s_add_u32 s{S_A}, s{S_A}, s{S_B}
            s_lshr_b32 s{S_B}, s{S_TB+b}, 1
            s_cmp_eq_u32 s{S_TYPE}, 0
            s_cselect_b32 s{S_A}, s{S_TB+b}, s{S_A}
            s_cselect_b32 s{S_B}, s{S_STRIPE}, s{S_B}
            s_mul_i32 s{S_A}, s{S_A}, 28
            s_add_u32 s{S_A}, s{S_A}, s{S_B}
            s_mul_i32 s{S_A}, s{S_A}, 3072
            s_add_u32 s{S_OVO+b}, s{S_A}, {OVBASE}
            s_mul_i32 s{S_B}, s{S_CL}, 56
            s_add_u32 s{S_B}, s{S_B}, s{S_TB+b}
            s_mul_i32 s{S_KO+b}, s{S_B}, {TILE}
            s_add_u32 s{S_KO2+b}, s{S_KO+b}, 4096
            """)
        return rest
    def xloads(b):
        for t in range(6):
            P(f"buffer_load_dwordx4 {a(A_XF+24*b+4*t,4)}, v{V_X}, s[{S_XSRD}:{S_XSRD+3}], s{S_XO+b} offen offset:{32*t}{XPOL}")
    P(f"""
    s_lshl_b32 s{S_A}, s{S_WAVE}, 6
    v_add_u32 v{V_TMP}, s{S_A}, v{V_TMP+1}
    v_mul_u32_u24 v{V_TMP+2}, 10923, v{V_TMP}
    v_lshrrev_b32 v{V_TMP+2}, 16, v{V_TMP+2}
    v_mul_u32_u24 v{V_TMP+3}, 6, v{V_TMP+2}
    v_sub_u32 v{V_TMP+3}, v{V_TMP}, v{V_TMP+3}
    v_mul_u32_u24 v{V_TMP+2}, 576, v{V_TMP+2}
    v_lshlrev_b32 v{V_TMP+3}, 4, v{V_TMP+3}
    v_add_u32 v{V_LW}, v{V_TMP+2}, v{V_TMP+3}
    s_xor_b32 s{S_B}, s{S_TYPE}, 1
    s_mul_i32 s{S_B}, s{S_B}, 96
    s_lshl_b32 s{S_A}, s{S_WAVE}, 10
    s_add_u32 s{S_A}, s{S_A}, {WIMG}
    s_waitcnt lgkmcnt(0)
    s_mov_b32 s{S_W}, s6
    s_and_b32 s{S_W+1}, s7, 0xffff
    s_mov_b32 s{S_W+2}, {WBYTES}
    s_mov_b32 s{S_W+3}, 0x20000
    s_mov_b32 s{S_XSRD}, s4
    s_and_b32 s{S_XSRD+1}, s5, 0xffff
    s_mov_b32 s{S_XSRD+2}, {XBYTES}
    s_mov_b32 s{S_XSRD+3}, 0x20000
    """)
    P.ext(mark_t("start"))
    P(f"s_cmp_eq_u32 s{S_WAVE}, 3\ns_cbranch_scc1 L_nowdma")
    for seg in range(3):
        for k in range(3):
            P(f"s_add_u32 m0, s{S_A}, {seg*PLANE + k*3072}")
            P(f"s_add_u32 s{S_C}, s{S_B}, {seg*192 + k*32*576}")
            P(f"buffer_load_dwordx4 v{V_LW}, s[{S_W}:{S_W+3}], s{S_C} offen lds")
    P("L_nowdma:")
    rest0 = geom(0); xloads(0)
    rests = []
    r = geom(1); xloads(1); rests.append(r)
    P.ext(mark_t("issued loads"))
    rests.append(geom(2)); rests.append(geom(3))
    P(f"""
    s_mov_b32 s{S_WO}, s60
    s_and_b32 s{S_WO+1}, s61, 0xffff
    s_mov_b32 s{S_WO+2}, {WOBYTES}
    s_mov_b32 s{S_WO+3}, 0x20000
    s_mov_b32 s{S_OUT}, s62
    s_and_b32 s{S_OUT+1}, s63, 0xffff
    s_mov_b32 s{S_OUT+2}, {XBYTES}
    s_mov_b32 s{S_OUT+3}, 0x20000
    s_mov_b32 s{S_DBG}, s64
    s_mov_b32 s{S_DBG+1}, s65
    s_mov_b32 s{S_WS}, s66
    s_and_b32 s{S_WS+1}, s67, 0xffff
    s_mov_b32 s{S_WS+2}, {WSBYTES}
    s_mov_b32 s{S_WS+3}, 0x20000
    s_mov_b32 s{S_DM}, s66
    s_and_b32 s{S_DM+1}, s67, 0xffff
    s_mov_b32 s{S_DM+2}, {KVBYTES}
    s_mov_b32 s{S_DM+3}, 0x20000
    s_mov_b32 s{S_NREC}, {KVBYTES}
    s_mov_b32 s{S_SC}, {SCALE_HEX:#x}
    s_mov_b32 s{S_SC+1}, {SCALE_HEX:#x}
    s_sub_u32 s{S_NCL}, 5, s{S_TYPE}
    """)
    P(f"""
    s_getreg_b32 s{S_A}, hwreg(HW_REG_XCC_ID, 0, 4)
    s_mul_i32 s{S_B}, s{S_A}, s{S_A}
    s_lshl_b32 s{S_B}, s{S_B}, 10
    s_lshl_b32 s{S_A}, s{S_A}, 3
    s_add_u32 s{S_A}, s{S_A}, s{S_B}
    s_add_u32 s{S_A}, s{S_A}, 1
    s_mul_i32 s{S_EXP}, s{S_A}, s{S_NCL}
    s_lshl_b32 s{S_A}, s{S_A}, 6
    s_lshl_b32 s{S_B}, s{S_CL}, 2
    v_mov_b32 v{V_PADDR}, s{S_B}
    v_mov_b32 v{V_TMP}, s{S_A}
    s_cmp_eq_u32 s{S_WAVE}, 0
    s_cbranch_scc0 L_noarr
    """)
    P.ext(lane_exec1([f"global_atomic_add v{V_PADDR}, v{V_TMP}, s[{S_DBG}:{S_DBG+1}] sc1"]))
    P("L_noarr:")
    rest0()
    for r in rests: r()
    for b in range(3):
        P(f"""
        s_mul_i32 s{S_A}, s{S_WAVE}, 3
        s_add_u32 s{S_A}, s{S_A}, s{S_START}
        s_add_u32 s{S_A}, s{S_A}, {b}
        s_cmp_ge_u32 s{S_A}, 56
        s_cselect_b32 s{S_OVO+b}, 0x7fff0000, s{S_OVO+b}
        """)
    P(f"""
    v_lshrrev_b32 v{V_TMP+1}, 4, v{V_L16}
    v_lshrrev_b32 v{V_TMP+2}, 5, v{V_TMP+1}
    v_lshlrev_b32 v{V_TMP+2}, 3, v{V_TMP+2}
    v_and_b32 v{V_TMP}, 15, v{V_TMP+1}
    v_lshrrev_b32 v{V_TMP}, 2, v{V_TMP}
    v_add_u32 v{V_TMP+2}, v{V_TMP+2}, v{V_TMP}
    v_mul_u32_u24 v{V_W0}, 96, v{V_TMP+2}
    v_lshrrev_b32 v{V_TMP+2}, 4, v{V_TMP+1}
    v_and_b32 v{V_TMP+2}, 1, v{V_TMP+2}
    v_lshlrev_b32 v{V_TMP}, 5, v{V_TMP+2}
    v_add_u32 v{V_W0}, v{V_W0}, v{V_TMP}
    v_and_b32 v{V_TMP}, 3, v{V_TMP+1}
    v_lshlrev_b32 v{V_TMP}, 3, v{V_TMP}
    v_add_u32 v{V_W0}, v{V_W0}, v{V_TMP}
    v_add_u32 v{V_W0}, {WIMG}, v{V_W0}
    v_mul_u32_u24 v{V_TMP+2}, {PLANE - 96}, v{V_TMP+2}
    v_add_u32 v{V_W1}, v{V_W0}, v{V_TMP+2}
    v_and_b32 v{V_TMP}, 27, v{V_TMP+1}
    v_cmp_eq_u32 vcc, 16, v{V_TMP}
    v_mov_b32 v{V_TMP+2}, 0
    v_mov_b32 v{V_TMP}, 1.0
    v_cndmask_b32 v{V_ONES}, v{V_TMP+2}, v{V_TMP}, vcc
    v_and_b32 v{V_TMP}, 16, v{V_TMP+1}
    v_cmp_eq_u32 s[{S_MASK}:{S_MASK+1}], 0, v{V_TMP}
    """)
    for r in range(1, 16): P(f"v_mov_b32 v{V_ONES+r}, v{V_ONES}")
    section_check([l for l in P.L[mark:] if not l.startswith("s_waitcnt vmcnt")], "prologue")

DJ = [16, 32, 48, 64]
WOFFS = [0, 64, PLANE + 32, 2*PLANE, 2*PLANE + 64]
def tr_reads(tile):
    L = []
    for t in range(6):
        for jj in range(2):
            base = V_W1 if tile == 1 else V_W0
            off = (16*t + 4*jj)*96 + WOFFS[tile]
            if tile < 4: L.append(f"ds_read_b64_tr_b16 {a(wf(tile,t)+2*jj,2)}, v{base} offset:{off}")
            else: L.append(f"ds_read_b64_tr_b16 {v(80+4*t+2*jj,2)}, v{base} offset:{off}")
    return L
def job_mfmas(k):
    b, tile = divmod(k, 5)
    D = DJ[k % 4]; d = v(D, 16); L = []
    for t in range(6):
        xf = a(A_XF+24*b+4*t, 4)
        if tile < 3:
            L.append(f"v_mfma_f32_32x32x16_bf16 {d}, {a(wf(tile,t),4)}, {xf}, {'0' if t == 0 else d}")
        else:
            c = d if t > 0 else ('0' if tile == 3 else v(V_ONES, 16))
            L.append(f"v_mfma_f32_32x32x16_bf16 {d}, {xf}, {a(wf(tile,t),4)}, {c}")
    return L
PKN = [0]
def job_post(k):
    b, tile = divmod(k, 5)
    D = DJ[k % 4]; L = []
    def out_frag(sreg, c):
        tmp = V_PK + 4*(PKN[0] % 4); PKN[0] += 1
        for j in range(4):
            L.append(f"v_cvt_pk_bf16_f32 v{tmp+j}, v{sreg+2*j}, v{sreg+2*j+1}")
        if b < 3: L.append(f"ds_write_b128 v{V_LW}, {v(tmp,4)} offset:{c*1024}")
        so = S_KO+b if c < 4 else S_KO2+b
        L.append(f"buffer_store_dwordx4 {v(tmp,4)}, v{V_L16}, s[{S_WS}:{S_WS+3}], s{so} offen offset:{(c%4)*1024}")
    def qpart(r0, n, q0):
        for r in range(r0, r0+n, 2):
            L.append(f"v_pk_mul_f32 {v(D+r,2)}, {v(D+r,2)}, s[{S_SC}:{S_SC+1}]")
        for j in range(n//2):
            L.append(f"v_cvt_pk_bf16_f32 v{Q(b)+q0+j}, v{D+r0+2*j}, v{D+r0+2*j+1}")
    if tile == 0:
        if b < 3: L.append(f"v_add_u32 v{V_LW}, s{S_LO+b}, v{V_L16}")
        qpart(0, 16, 0)
    elif tile == 1:
        qpart(0, 8, 8); out_frag(D+8, 0)
    elif tile == 2:
        out_frag(D, 1); out_frag(D+8, 2)
    elif tile == 3:
        out_frag(D, 3); out_frag(D+8, 4)
    else:
        out_frag(D, 5); out_frag(D+8, 6)
    return L

def fcost(x):
    if x.startswith("ds_write"): return 24
    if x.startswith("buffer_store"): return 16
    if x.startswith(("buffer_", "global_")): return 12
    if x.startswith("ds_read"): return 6
    if x.startswith("s_nop"): return 4 * (int(x.split()[1]) + 1)
    if x.startswith("WAIT"): return 0
    return 4
def interleave(mf, fill, start=8, per=4, budget=None):
    out = []
    fill = list(fill)
    for i, m in enumerate(mf):
        out.append(m)
        if i >= start:
            if budget is None:
                for k in range(per):
                    if fill: out.append(fill.pop(0))
            else:
                t = 0
                while fill and (t == 0 or t + fcost(fill[0]) <= budget):
                    t += fcost(fill[0]); out.append(fill.pop(0))
    out.extend(fill)
    return out

def resolve_vm(lines, pre_ops):
    q = list(pre_ops); out = []
    for l in lines:
        if l.startswith("WAITX"):
            b = int(l.split()[1])
            idx = max(i for i, t in enumerate(q) if t == f"x{b}")
            out.append(f"s_waitcnt vmcnt({len(q) - 1 - idx})")
        else:
            out.append(l)
            if l.startswith(("buffer_", "global_")):
                m = re.search(r"a\[(\d+):", l)
                if l.startswith("buffer_load") and m and " lds" not in l and int(m.group(1)) >= A_XF: q.append(f"x{(int(m.group(1)) - A_XF)//24}")
                else: q.append("o")
    return out, q

def production():
    import re as _re
    global re
    re = _re
    def xl(b): return [f"buffer_load_dwordx4 {a(A_XF+24*b+4*t,4)}, v{V_X}, s[{S_XSRD}:{S_XSRD+3}], s{S_XO+b} offen offset:{32*t}{XPOL}" for t in range(6)]
    P("s_waitcnt vmcnt(12)")
    P.ext(mark_t("W landed", 2))
    P("s_barrier")
    L = []
    L += tr_reads(0) + tr_reads(1) + xl(2)
    L += ["s_waitcnt lgkmcnt(12)", "WAITX 0"]
    mask = [f"v_cndmask_b32 v{80+r}, 0, v{80+r}, s[{S_MASK}:{S_MASK+1}]" for r in range(24)] + [f"v_accvgpr_write_b32 {a(wf(4,0)+r)}, v{80+r}" for r in range(24)]
    def stream(k0, k1, L):
        for k in range(k0, k1):
            fill = []
            if k == 0: fill = tr_reads(2) + xl(3)
            if k == 1: fill = tr_reads(3)
            if k == 2: fill = tr_reads(4) + job_post(0)
            if k == 3: fill = job_post(1) + mask[:24]
            if k == 4: fill = mask[24:] + job_post(2)
            if k >= 5: fill = job_post(k-2)
            if k in (1, 2, 3): L.append("s_waitcnt lgkmcnt(0)")
            if k == 4:
                L.append("s_waitcnt lgkmcnt(0)")
                L.extend(mask); L.append("s_nop 1")
                fill = job_post(2)
            if k == 3: fill = job_post(1)
            if k % 5 == 0 and k > 0: L.append(f"WAITX {k//5}")
            L.extend(interleave(job_mfmas(k), fill, start=0, budget=24))
    stream(0, 15, L)
    Lc, q = resolve_vm(L, ["o"]*9 + ["x0"]*6 + ["x1"]*6)
    P.ext(Lc)
    P.ext(mark_t("M2 issued", 28))
    P(f"s_cmp_eq_u32 s{S_TYPE}, 0")
    P("s_cbranch_scc1 L_prodV")
    LH = []
    stream(15, 20, LH)
    pk = PKN[0]
    LH += ["s_nop 3"] + job_post(18) + ["s_nop 3"] + job_post(19)
    LH, _ = resolve_vm(LH, q)
    P.ext(LH)
    P("s_branch L_proddone")
    P("L_prodV:")
    PKN[0] = pk - 0
    LV = ["s_nop 3"] + job_post(13) + ["s_nop 3"] + job_post(14)
    P.ext(LV)
    P("L_proddone:")
    pre = xl(0) + xl(1)
    section_check(pre + Lc + LH, "prodH")
    section_check(pre + Lc + LV, "prodV")

def attn_setup():
    P(f"""
    global_load_dword v{V_POLL}, v{V_PADDR}, s[{S_DBG}:{S_DBG+1}] sc1
    s_mul_i32 s{S_A}, s{S_CL}, {56*TILE}
    s_add_u32 s{S_GEND}, s{S_A}, {56*TILE}
    s_add_u32 s{S_B}, s{S_START}, s{S_WAVE}
    s_add_u32 s{S_B}, s{S_B}, 8
    s_cmp_ge_u32 s{S_B}, 56
    s_cselect_b32 s{S_C}, 56, 0
    s_sub_u32 s{S_B}, s{S_B}, s{S_C}
    s_mul_i32 s{S_B}, s{S_B}, {TILE}
    s_add_u32 s{S_GOFF}, s{S_A}, s{S_B}
    s_mul_i32 s{S_LBASE}, s{S_WAVE}, {TILE}
    s_add_u32 s{S_LBASE}, s{S_LBASE}, {DSLOT}
    s_and_b32 s{S_A}, s{S_WAVE}, 1
    s_mul_i32 s{S_A}, s{S_A}, s{S_TYPE}
    """)
    for p in range(4):
        P(f"""
        s_add_u32 s{S_B}, s{S_A}, {p}
        s_and_b32 s{S_B}, s{S_B}, 3
        s_mul_i32 s{S_B}, s{S_B}, {TILE}
        v_add_u32 v{V_AP+p}, s{S_B}, v{V_L16}
        """)
    P(f"""
    s_mov_b32 s{S_DELTA}, {DSLOT}
    s_mov_b32 s{S_IT}, 0
    s_waitcnt lgkmcnt(0)
    s_barrier
    """)

def same_xcd_scc(vreg):
    return [f"v_readfirstlane_b32 s{S_A}, v{vreg}", "s_nop 3", f"s_bfe_u32 s{S_A}, s{S_A}, {(21 << 16) | 6:#x}", f"s_cmp_eq_u32 s{S_A}, s{S_EXP}"]

def first_hooks(typ, ns, B):
    t = typ
    bar0 = [f"s_cmp_eq_u32 s{S_WAVE}, 0", f"s_cbranch_scc0 L_f0_{t}"]
    bar0 += same_xcd_scc(V_POLL)
    bar0 += [f"s_cbranch_scc1 L_f0w_{t}", "buffer_wbl2 sc1", "s_waitcnt vmcnt(0)", f"L_f0w_{t}:", f"v_mov_b32 v{V_TMP}, 1", "s_nop 1"]
    bar0 += lane_exec1([f"global_atomic_add v{V_PADDR}, v{V_TMP}, s[{S_DBG}:{S_DBG+1}] sc1"])
    bar0 += [f"L_f0_{t}:"]
    bar0 += mark_t(f"bar0 {t}", 6)
    bar1 = [f"s_mov_b32 s{S_CNT}, 0x40000", f"L_f1_{t}:",
            f"v_readfirstlane_b32 s{S_A}, v{V_POLL}", "s_nop 3", f"s_and_b32 s{S_A}, s{S_A}, 7", f"s_cmp_ge_u32 s{S_A}, s{S_NCL}",
            f"s_cbranch_scc1 L_f1ok_{t}",
            f"global_load_dword v{V_POLL}, v{V_PADDR}, s[{S_DBG}:{S_DBG+1}] sc1", "s_waitcnt vmcnt(0)",
            f"s_sub_u32 s{S_CNT}, s{S_CNT}, 1", f"s_cmp_lg_u32 s{S_CNT}, 0", f"s_cbranch_scc1 L_f1_{t}",
            f"L_f1ok_{t}:"]
    bar1 += same_xcd_scc(V_POLL)
    bar1 += [f"s_cbranch_scc1 L_f1s_{t}", "buffer_inv sc1", "s_waitcnt vmcnt(0)", f"L_f1s_{t}:"]
    bar1 += mark_t(f"bar1 polled {t}", 8)
    bar1 = mark_t(f"bar1 passed {t}", 7) + bar1
    hooks = {'bar0': ("s_waitcnt vmcnt(0) lgkmcnt(0)", bar0), 'bar1': ("s_waitcnt vmcnt(0) lgkmcnt(0)", bar1)}
    hooks['ins'] = {(ns + B - 4, 3): [f"global_load_dword v{V_POLL}, v{V_PADDR}, s[{S_DBG}:{S_DBG+1}] sc1"]}
    if typ == 'H':
        wod = [f"s_mul_i32 s{S_A}, s{S_WAVE}, {5*1024}", f"s_add_u32 m0, s{S_A}, {WOIMG}"]
        wod += [f"buffer_load_dwordx4 v{V_L16}, s[{S_WO}:{S_WO+3}], s{S_A} offen offset:{c*1024} lds" for c in range(4)]
        wod += [f"s_add_u32 s{S_A}, s{S_A}, 4096", f"s_add_u32 m0, s{S_A}, {WOIMG}", f"buffer_load_dwordx4 v{V_L16}, s[{S_WO}:{S_WO+3}], s{S_A} offen lds"]
        adr = [f"v_lshrrev_b32 v{V_TMP+1}, 4, v{V_L16}", f"v_lshrrev_b32 v{V_W1}, 5, v{V_TMP+1}", f"v_lshlrev_b32 v{V_W1}, 2, v{V_W1}",
               f"v_and_b32 v{V_LW}, 15, v{V_TMP+1}", f"v_lshrrev_b32 v{V_LW}, 2, v{V_LW}", f"v_add_u32 v{V_W1}, v{V_W1}, v{V_LW}",
               f"v_mul_u32_u24 v{V_W0}, 192, v{V_W1}", f"v_lshrrev_b32 v{V_W1}, 4, v{V_TMP+1}", f"v_and_b32 v{V_W1}, 1, v{V_W1}",
               f"v_lshlrev_b32 v{V_W1}, 5, v{V_W1}", f"v_add_u32 v{V_W0}, v{V_W0}, v{V_W1}", f"v_and_b32 v{V_LW}, 3, v{V_TMP+1}",
               f"v_lshlrev_b32 v{V_LW}, 3, v{V_LW}", f"v_add_u32 v{V_W0}, v{V_W0}, v{V_LW}", f"v_add_u32 v{V_W0}, {WOIMG}, v{V_W0}"]
        trs = []
        for m in range(3):
            for tt in range(6):
                for jj in range(2):
                    trs.append(f"ds_read_b64_tr_b16 {a(A_WO+(m*6+tt)*4+2*jj,2)}, v{V_W0} offset:{(16*tt + 8*jj)*192 + 64*m}")
        hooks['chain'] = {1: wod + adr, B + 1: trs}
    return hooks

def poll2_addr():
    return [f"s_mul_i32 s{S_A}, s{S_J}, 7", f"v_lshrrev_b32 v{V_PADDR}, 4, v{V_L16}", f"v_min_u32 v{V_PADDR}, 6, v{V_PADDR}",
            f"v_add_u32 v{V_PADDR}, s{S_A}, v{V_PADDR}", f"v_lshlrev_b32 v{V_PADDR}, 2, v{V_PADDR}"]

STUBS = []
def steady_hooks(typ):
    if typ != 'H': return {}
    h = {}
    h['bar0'] = ("s_waitcnt vmcnt(0) lgkmcnt(0)", [f"s_cmp_eq_u32 s{S_IT}, {NSTAGE-2}", "s_cbranch_scc1 L_stub0", "L_stub0_ret:"])
    h['bar1'] = ("s_waitcnt vmcnt(0) lgkmcnt(0)", [f"s_cmp_eq_u32 s{S_IT}, {NSTAGE-2}", "s_cbranch_scc1 L_stub1", "L_stub1_ret:"])
    st = ["L_stub0:"] + poll2_addr() + [f"global_load_dword v{V_POLL}, v{V_PADDR}, s[{S_DBG}:{S_DBG+1}] sc1", "s_branch L_stub0_ret"]
    st += ["L_stub1:", "s_waitcnt vmcnt(0)", f"s_mov_b32 s{S_CNT}, 0x40000", "L_p2:",
           f"v_bfe_u32 v{V_POLL}, v{V_POLL}, 3, 3", f"v_cmp_gt_u32 vcc, 5, v{V_POLL}", "s_nop 3", "s_cmp_eq_u64 vcc, 0", "s_cbranch_scc1 L_p2ok",
           f"global_load_dword v{V_POLL}, v{V_PADDR}, s[{S_DBG}:{S_DBG+1}] sc1", "s_waitcnt vmcnt(0)",
           f"s_sub_u32 s{S_CNT}, s{S_CNT}, 1", f"s_cmp_lg_u32 s{S_CNT}, 0", "s_cbranch_scc1 L_p2", "L_p2ok:"]
    for q in range(4):
        for t in range(3):
            st.append(f"buffer_load_dwordx4 {a(A_OV+12*q+4*t,4)}, v{V_L16}, s[{S_WS}:{S_WS+3}], s{S_OVO+q} offen offset:{t*1024} sc1")
    st.append("s_branch L_stub1_ret")
    STUBS.extend(st)
    return h

def main_loops():
    P(f"s_cmp_eq_u32 s{S_TYPE}, 0")
    P("s_cbranch_scc1 L_startV")
    for typ in "HV":
        r0 = build(typ, typ)
        f = build(typ, typ, 'first', first_hooks(typ, r0['ns'], r0['B']))
        r = build(typ, typ, 'steady', steady_hooks(typ))
        if typ == 'V': P("L_startV:")
        P.ext(f['pre']); P.ext(f['body']); P.ext(f['tail'][:-1])
        P.ext(mark_t(f"first iter done {typ}", 9))
        P(".p2align 6")
        P(f"L_loop_{typ}:")
        P.ext(r['body'])
        if TIMING:
            P(f"""
            s_memrealtime s[56:57]
            s_memtime s[58:59]
            s_lshr_b32 s57, s{S_IT}, 1
            s_waitcnt lgkmcnt(0)
            s_lshr_b32 s57, s{S_IT}, 1
            s_add_u32 m0, s57, 16
            s_nop 3
            v_writelane_b32 v14, s56, m0
            v_writelane_b32 v15, s58, m0
            """)
        P.ext(r['tail']); P.ext(r['post'])
        P(f"s_branch L_epi{typ}")
        nb = lambda L: [x for x in L if not x.startswith(("s_cbranch", "s_branch"))]
        section_check(f['pre'] + nb(f['body']) + f['tail'][:-1] + nb(r['body']) + r['tail'][:-1] + nb(r['body']) + r['post'], "loop" + typ)

def norm_ops(q):
    o = O(q)
    L = [f"v_rcp_f32 v{V_TMP}, v{o+24}", "s_nop 0"]
    for r in range(0, 24, 2):
        L.append(f"v_pk_mul_f32 {v(o+r,2)}, {v(o+r,2)}, {v(V_TMP,2)} op_sel_hi:[1,0]")
    for j in range(12):
        L.append(f"v_cvt_pk_bf16_f32 v{o+j}, v{o+2*j}, v{o+2*j+1}")
    return L

def epilogue_V():
    P("L_epiV:")
    P.ext(mark_t("V loop end", 10))
    mark = len(P.L)
    P("s_nop 7\ns_nop 7")
    for q in range(3):
        P.ext(norm_ops(q))
        for t in range(3):
            P(f"buffer_store_dwordx4 {v(O(q)+4*t,4)}, v{V_L16}, s[{S_WS}:{S_WS+3}], s{S_OVO+q} offen offset:{t*1024} sc1")
    P("s_waitcnt vmcnt(0)")
    P("s_barrier")
    section_check(P.L[mark:], "epiV")
    P(f"s_cmp_eq_u32 s{S_WAVE}, 0\ns_cbranch_scc0 L_sig2\nv_mov_b32 v{V_TMP}, 8\ns_lshl_b32 s{S_B}, s{S_CL}, 2\nv_mov_b32 v{V_PADDR}, s{S_B}\ns_nop 1")
    P.ext(lane_exec1([f"global_atomic_add v{V_PADDR}, v{V_TMP}, s[{S_DBG}:{S_DBG+1}] sc1"]))
    P("L_sig2:")
    P.ext(mark_t("V epi end"))
    P("s_branch L_exit2" if TIMING else "s_branch L_exit")

def epilogue_H():
    P("L_epiH:")
    P.ext(mark_t("H loop end", 10))
    mark = len(P.L)
    DS = [208, 144]
    def M(q):
        D = DS[q % 2]; L = []
        for t in range(6):
            for m in range(3):
                bsrc = v(O(q)+4*t, 4) if t < 3 else a(A_OV+12*q+4*(t-3), 4)
                d = v(D+16*m, 16)
                L.append(f"v_mfma_f32_32x32x16_bf16 {d}, {a(A_WO+(m*6+t)*4,4)}, {bsrc}, {'0' if t == 0 else d}")
        return L
    def F(q):
        D = DS[q % 2]; L = []
        for m in range(3):
            for pr in range(2):
                tmp = 192 + 4*((2*m+pr) % 4)
                for j in range(4):
                    L.append(f"v_cvt_pk_bf16_f32 v{tmp+j}, v{D+16*m+8*pr+2*j}, v{D+16*m+8*pr+2*j+1}")
                L.append("s_nop 1")
                L.append(f"v_permlane32_swap_b32 v{tmp}, v{tmp+2}")
                L.append(f"v_permlane32_swap_b32 v{tmp+1}, v{tmp+3}")
                L.append(f"buffer_store_dwordx4 {v(tmp,4)}, v{V_X}, s[{S_OUT}:{S_OUT+3}], s{S_XO+q} offen offset:{64*m+32*pr}")
        return L
    P(f"""
    s_lshr_b32 s{S_A}, s{S_WAVE}, 1
    s_mul_i32 s{S_A}, s{S_A}, {TILE}
    s_add_u32 s{S_A}, s{S_A}, {XCHG}
    v_add_u32 v{V_LW}, s{S_A}, v{V_L16}
    s_and_b32 s{S_B}, s{S_WAVE}, 1
    s_nop 7
    s_nop 7
    s_cmp_eq_u32 s{S_B}, 0
    s_cbranch_scc1 L_xw_skip
    """)
    for c in range(7):
        P(f"ds_write_b128 v{V_LW}, {v(O(3)+4*c,4)} offset:{c*1024}")
    P("L_xw_skip:")
    P.ext(norm_ops(0))
    P("s_waitcnt lgkmcnt(0)")
    P("s_barrier")
    P("s_waitcnt vmcnt(0)")
    P.ext(interleave(M(0), norm_ops(1), start=0, per=2))
    P.ext(interleave(M(1), norm_ops(2) + F(0), start=0, per=4))
    m1 = len(P.L)
    P(f"s_cmp_eq_u32 s{S_B}, 0")
    P("s_cbranch_scc0 L_epi_odd")
    me = len(P.L)
    xr = [f"ds_read_b128 {v(O(0)+4*c,4)}, v{V_LW} offset:{c*1024}" for c in range(7)]
    xa = ["s_waitcnt lgkmcnt(0)"] + [f"v_add_f32 v{O(3)+r}, v{O(3)+r}, v{O(0)+r}" for r in range(28)]
    P.ext(interleave(M(2), xr + ["s_nop 0"]*2 + F(1)[:18] + xa + norm_ops(3) + F(1)[18:], start=0, per=6))
    P("s_nop 1")
    P.ext(interleave(M(3), ["s_nop 0"]*8 + F(2), start=0, per=4))
    P("s_nop 7\ns_nop 7")
    P.ext(F(3))
    section_check(P.L[mark:m1] + P.L[me:], "epiH_even")
    P.ext(mark_t("H even end", 12))
    P("s_branch L_exit2" if TIMING else "s_branch L_exit")
    P("L_epi_odd:")
    mo = len(P.L)
    P.ext(interleave(M(2), ["s_nop 0"]*8 + F(1), start=0, per=4))
    P("s_nop 7\ns_nop 7")
    P.ext(F(2))
    section_check(P.L[mark:m1] + P.L[mo:], "epiH_odd")
    P.ext(mark_t("H odd end", 11))

prologue()
production()
P.ext(mark_t("production done", 5))
attn_setup()
main_loops()
epilogue_V()
epilogue_H()
if TIMING:
    P("L_exit2:")
    P(f"""
    s_lshl_b32 s57, s{S_WGID}, 2
    s_add_u32 s57, s57, s{S_WAVE}
    s_lshl_b32 s57, s57, 8
    s_add_u32 s57, s57, {TMBASE}
    v_lshrrev_b32 v13, 1, v{V_L16}
    s_mov_b64 exec, 0xffffffff
    buffer_store_dwordx2 v[14:15], v13, s[{S_WS}:{S_WS+3}], s57 offen
    """)
P("L_exit:")
P("s_endpgm")
P.ext(STUBS)

if CHK:
    print("\n".join(CHK[:40])); print(len(CHK), "problems"); sys.exit(1)
hdr = open("standalone__window_attn_cswin__vision.s.ref").read().split("; Override launch")[0]
src = hdr + f"; @launch grid=(256,1,1) block=(256,1,1) lds={LDSBYTES}\n" + '.amdgcn_target "amdgcn-amd-amdhsa--gfx950"\n.text\n' + kernel_header(NAME) + P.text() + kernel_footer(NAME, 512, 256, 100, 48)
out = os.environ.get("OUT", "kernel.s")
open(out, "w").write(src)
print("written", out, len(P.L), "lines")
```

```python
import sys, os
from common import *
import mainloop as ML

XPOL = os.environ.get("XPOL", "")
NAME = "standalone__window_attn_cswin__vision_kernel"
STOP = os.environ.get("STOP", "")
TIMING = os.environ.get("TIMING", "")
HSPAN = os.environ.get("HSPAN", "")
DOFF = 8 if HSPAN else 0
PERMUTE = os.environ.get("PERMUTE", "")
XBYTES = 224*224*96*2
WBYTES = 96*288*2
WOBYTES = 96*96*2
KVBYTES = 56*56*TILE
OVBASE = 0x1600000
OVBYTES = 56*28*3072
WSBYTES = 0x1E00000
TMBASE = 0x1C00000
assert OVBASE >= KVBYTES
WIMG = 3*STAGE
PLANE = 9216
XCHG = RING
WOIMG = 163840 - WOBYTES
LDSBYTES = 163840
SCALE_HEX = 0x3e553b95

S_SC = 46
S_XO = 68
S_TB = 72
S_KO = 76
S_KO2 = 80
S_LO = 84
S_OVO = 88
S_MASK = 92
S_CNT = 94
S_EXP = 95
S_NCL = 29

A_XF = 160
A_WF = 40
A_WO = 64
A_OV = 140
V_X = 6; V_W0 = 7; V_W1 = 8; V_LW = 9
V_TMP = 10
V_POLL = 12
V_PADDR = 13
DSET = [16, 96]
V_ONES = 176
V_PK = 192

P = Prog()
CHK = []
NMARK = [0]
def mark_t(name, idx=None):
    if not TIMING: return []
    if idx is not None: NMARK[0] = idx
    i = NMARK[0]; NMARK[0] += 1
    print("mark", i, name)
    return ["s_memrealtime s[56:57]", "s_memtime s[58:59]", "s_waitcnt lgkmcnt(0)",
            f"v_writelane_b32 v14, s56, {i}", f"v_writelane_b32 v15, s58, {i}"]
def span(slot, neg=False):
    if not HSPAN: return []
    L = ["s_memrealtime s[56:57]", "s_waitcnt lgkmcnt(0)"]
    if neg: L.append("s_not_b32 s56, s56")
    L += [f"v_mov_b32 v14, s56", f"v_mov_b32 v15, {slot*4}", "s_mov_b64 s[98:99], exec", "s_mov_b64 exec, 1",
          f"global_atomic_umax v15, v14, s[{S_DBG}:{S_DBG+1}] sc1", "s_mov_b64 exec, s[98:99]"]
    return L
def section_check(lines, name):
    CHK.extend(check_linear([l for l in lines], name))
def wf(tile, t): return A_WF + (tile*6 + t)*4

def lane_exec1(lines):
    return [f"s_mov_b64 s[{S_MASK}:{S_MASK+1}], exec", "s_mov_b64 exec, 1"] + lines + [f"s_mov_b64 exec, s[{S_MASK}:{S_MASK+1}]"]

def prologue():
    P(f"""
    s_load_dwordx4 s[4:7], s[0:1], 0
    s_load_dwordx4 s[60:63], s[0:1], 16
    s_load_dwordx4 s[64:67], s[0:1], 32
    v_lshrrev_b32 v{V_TMP}, 6, v0
    v_and_b32 v{V_TMP+1}, 63, v0
    v_lshlrev_b32 v{V_L16}, 4, v{V_TMP+1}
    v_readfirstlane_b32 s{S_WAVE}, v{V_TMP}
    """)
    if PERMUTE:
        P(f"s_cmp_ge_u32 s{S_WGID}, 256\ns_cbranch_scc1 L_exit")
        P(f"s_lshr_b32 s{S_A}, s{S_WGID}, 3\ns_lshl_b32 s{S_WGID}, s{S_WGID}, 5\ns_or_b32 s{S_WGID}, s{S_WGID}, s{S_A}\ns_and_b32 s{S_WGID}, s{S_WGID}, 255")
    role_decode(P, "L_exit")
    mark = len(P.L)
    P(f"""
    v_and_b32 v{V_TMP}, 31, v{V_TMP+1}
    v_lshrrev_b32 v{V_TMP+2}, 3, v{V_TMP}
    v_and_b32 v{V_TMP+3}, 7, v{V_TMP}
    v_mul_u32_u24 v{V_TMP+2}, {224*192}, v{V_TMP+2}
    v_mul_u32_u24 v{V_TMP+3}, 192, v{V_TMP+3}
    v_add_u32 v{V_X}, v{V_TMP+2}, v{V_TMP+3}
    v_lshrrev_b32 v{V_TMP+2}, 5, v{V_TMP+1}
    v_lshlrev_b32 v{V_TMP+3}, 4, v{V_TMP+2}
    v_add_u32 v{V_X}, v{V_X}, v{V_TMP+3}
    """)
    def geom(b):
        if b < 3:
            P(f"s_mul_i32 s{S_A}, s{S_WAVE}, 3\ns_add_u32 s{S_A}, s{S_A}, {b}")
            P(f"""
            s_lshr_b32 s{S_B}, s{S_A}, 2
            s_mul_i32 s{S_B}, s{S_B}, {STAGE}
            s_and_b32 s{S_C}, s{S_A}, 3
            s_mul_i32 s{S_C}, s{S_C}, {TILE}
            s_add_u32 s{S_LO+b}, s{S_B}, s{S_C}
            """)
        else:
            P(f"s_lshr_b32 s{S_A}, s{S_WAVE}, 1\ns_add_u32 s{S_A}, s{S_A}, 12")
        P(f"""
        s_add_u32 s{S_A}, s{S_A}, s{S_START}
        s_cmp_ge_u32 s{S_A}, 56
        s_cselect_b32 s{S_B}, 56, 0
        s_cselect_b32 s{S_D}, 1, 0
        s_sub_u32 s{S_TB+b}, s{S_A}, s{S_B}
        s_and_b32 s{S_A}, s{S_TB+b}, 1
        s_lshl_b32 s{S_B}, s{S_STRIPE}, 1
        s_add_u32 s{S_A}, s{S_A}, s{S_B}
        s_lshr_b32 s{S_B}, s{S_TB+b}, 1
        s_cmp_eq_u32 s{S_TYPE}, 0
        s_cselect_b32 s{S_A}, s{S_TB+b}, s{S_A}
        s_cselect_b32 s{S_B}, s{S_STRIPE}, s{S_B}
        s_mul_i32 s{S_C}, s{S_A}, {4*224*192}
        s_mul_i32 s{S_XO+b}, s{S_B}, {8*192}
        s_add_u32 s{S_XO+b}, s{S_XO+b}, s{S_C}
        """)
        def rest():
            P(f"""
            s_and_b32 s{S_A}, s{S_TB+b}, 1
            s_lshl_b32 s{S_B}, s{S_STRIPE}, 1
            s_add_u32 s{S_A}, s{S_A}, s{S_B}
            s_lshr_b32 s{S_B}, s{S_TB+b}, 1
            s_cmp_eq_u32 s{S_TYPE}, 0
            s_cselect_b32 s{S_A}, s{S_TB+b}, s{S_A}
            s_cselect_b32 s{S_B}, s{S_STRIPE}, s{S_B}
            s_mul_i32 s{S_A}, s{S_A}, 28
            s_add_u32 s{S_A}, s{S_A}, s{S_B}
            s_mul_i32 s{S_A}, s{S_A}, 3072
            s_add_u32 s{S_OVO+b}, s{S_A}, {OVBASE}
            s_mul_i32 s{S_B}, s{S_CL}, 56
            s_add_u32 s{S_B}, s{S_B}, s{S_TB+b}
            s_mul_i32 s{S_KO+b}, s{S_B}, {TILE}
            s_add_u32 s{S_KO2+b}, s{S_KO+b}, 4096
            """)
        return rest
    def xloads(b):
        for t in range(6):
            P(f"buffer_load_dwordx4 {a(A_XF+24*b+4*t,4)}, v{V_X}, s[{S_XSRD}:{S_XSRD+3}], s{S_XO+b} offen offset:{32*t}{XPOL}")
    P(f"""
    s_lshl_b32 s{S_A}, s{S_WAVE}, 6
    v_add_u32 v{V_TMP}, s{S_A}, v{V_TMP+1}
    v_mul_u32_u24 v{V_TMP+2}, 10923, v{V_TMP}
    v_lshrrev_b32 v{V_TMP+2}, 16, v{V_TMP+2}
    v_mul_u32_u24 v{V_TMP+3}, 6, v{V_TMP+2}
    v_sub_u32 v{V_TMP+3}, v{V_TMP}, v{V_TMP+3}
    v_mul_u32_u24 v{V_TMP+2}, 576, v{V_TMP+2}
    v_lshlrev_b32 v{V_TMP+3}, 4, v{V_TMP+3}
    v_add_u32 v{V_LW}, v{V_TMP+2}, v{V_TMP+3}
    s_xor_b32 s{S_B}, s{S_TYPE}, 1
    s_mul_i32 s{S_B}, s{S_B}, 96
    s_lshl_b32 s{S_A}, s{S_WAVE}, 10
    s_add_u32 s{S_A}, s{S_A}, {WIMG}
    s_waitcnt lgkmcnt(0)
    s_mov_b32 s{S_W}, s6
    s_and_b32 s{S_W+1}, s7, 0xffff
    s_mov_b32 s{S_W+2}, {WBYTES}
    s_mov_b32 s{S_W+3}, 0x20000
    s_mov_b32 s{S_XSRD}, s4
    s_and_b32 s{S_XSRD+1}, s5, 0xffff
    s_mov_b32 s{S_XSRD+2}, {XBYTES}
    s_mov_b32 s{S_XSRD+3}, 0x20000
    """)
    P.ext(mark_t("start"))
    P(f"s_cmp_eq_u32 s{S_WAVE}, 3\ns_cbranch_scc1 L_nowdma")
    for seg in range(3):
        for k in range(3):
            P(f"s_add_u32 m0, s{S_A}, {seg*PLANE + k*3072}")
            P(f"s_add_u32 s{S_C}, s{S_B}, {seg*192 + k*32*576}")
            P(f"buffer_load_dwordx4 v{V_LW}, s[{S_W}:{S_W+3}], s{S_C} offen lds")
    P("L_nowdma:")
    rest0 = geom(0); xloads(0)
    rests = []
    r = geom(1); xloads(1); rests.append(r)
    P.ext(mark_t("issued loads"))
    rests.append(geom(2)); rests.append(geom(3))
    P(f"""
    s_mov_b32 s{S_WO}, s60
    s_and_b32 s{S_WO+1}, s61, 0xffff
    s_mov_b32 s{S_WO+2}, {WOBYTES}
    s_mov_b32 s{S_WO+3}, 0x20000
    s_mov_b32 s{S_OUT}, s62
    s_and_b32 s{S_OUT+1}, s63, 0xffff
    s_mov_b32 s{S_OUT+2}, {XBYTES}
    s_mov_b32 s{S_OUT+3}, 0x20000
    s_mov_b32 s{S_DBG}, s64
    s_mov_b32 s{S_DBG+1}, s65
    s_mov_b32 s{S_WS}, s66
    s_and_b32 s{S_WS+1}, s67, 0xffff
    s_mov_b32 s{S_WS+2}, {WSBYTES}
    s_mov_b32 s{S_WS+3}, 0x20000
    s_mov_b32 s{S_DM}, s66
    s_and_b32 s{S_DM+1}, s67, 0xffff
    s_mov_b32 s{S_DM+2}, {KVBYTES}
    s_mov_b32 s{S_DM+3}, 0x20000
    s_mov_b32 s{S_NREC}, {KVBYTES}
    s_mov_b32 s{S_SC}, {SCALE_HEX:#x}
    s_mov_b32 s{S_SC+1}, {SCALE_HEX:#x}
    s_sub_u32 s{S_NCL}, 5, s{S_TYPE}
    """)
    P(f"""
    s_getreg_b32 s{S_A}, hwreg(HW_REG_XCC_ID, 0, 4)
    s_mul_i32 s{S_B}, s{S_A}, s{S_A}
    s_lshl_b32 s{S_B}, s{S_B}, 10
    s_lshl_b32 s{S_A}, s{S_A}, 3
    s_add_u32 s{S_A}, s{S_A}, s{S_B}
    s_add_u32 s{S_A}, s{S_A}, 1
    s_mul_i32 s{S_EXP}, s{S_A}, s{S_NCL}
    s_lshl_b32 s{S_A}, s{S_A}, 6
    s_lshl_b32 s{S_B}, s{S_CL}, 2
    s_add_u32 s{S_B}, s{S_B}, {DOFF*4}
    v_mov_b32 v{V_PADDR}, s{S_B}
    v_mov_b32 v{V_TMP}, s{S_A}
    s_cmp_eq_u32 s{S_WAVE}, 0
    s_cbranch_scc0 L_noarr
    """)
    P.ext(lane_exec1([f"global_atomic_add v{V_PADDR}, v{V_TMP}, s[{S_DBG}:{S_DBG+1}] sc1"]))
    P("L_noarr:")
    P.ext(span(0, True))
    rest0()
    for r in rests: r()
    for b in range(3):
        P(f"""
        s_mul_i32 s{S_A}, s{S_WAVE}, 3
        s_add_u32 s{S_A}, s{S_A}, s{S_START}
        s_add_u32 s{S_A}, s{S_A}, {b}
        s_cmp_ge_u32 s{S_A}, 56
        s_cselect_b32 s{S_OVO+b}, 0x7fff0000, s{S_OVO+b}
        """)
    P(f"""
    v_lshrrev_b32 v{V_TMP+1}, 4, v{V_L16}
    v_lshrrev_b32 v{V_TMP+2}, 5, v{V_TMP+1}
    v_lshlrev_b32 v{V_TMP+2}, 3, v{V_TMP+2}
    v_and_b32 v{V_TMP}, 15, v{V_TMP+1}
    v_lshrrev_b32 v{V_TMP}, 2, v{V_TMP}
    v_add_u32 v{V_TMP+2}, v{V_TMP+2}, v{V_TMP}
    v_mul_u32_u24 v{V_W0}, 96, v{V_TMP+2}
    v_lshrrev_b32 v{V_TMP+2}, 4, v{V_TMP+1}
    v_and_b32 v{V_TMP+2}, 1, v{V_TMP+2}
    v_lshlrev_b32 v{V_TMP}, 5, v{V_TMP+2}
    v_add_u32 v{V_W0}, v{V_W0}, v{V_TMP}
    v_and_b32 v{V_TMP}, 3, v{V_TMP+1}
    v_lshlrev_b32 v{V_TMP}, 3, v{V_TMP}
    v_add_u32 v{V_W0}, v{V_W0}, v{V_TMP}
    v_add_u32 v{V_W0}, {WIMG}, v{V_W0}
    v_mul_u32_u24 v{V_TMP+2}, {PLANE - 96}, v{V_TMP+2}
    v_add_u32 v{V_W1}, v{V_W0}, v{V_TMP+2}
    v_and_b32 v{V_TMP}, 27, v{V_TMP+1}
    v_cmp_eq_u32 vcc, 16, v{V_TMP}
    v_mov_b32 v{V_TMP+2}, 0
    v_mov_b32 v{V_TMP}, 1.0
    v_cndmask_b32 v{V_ONES}, v{V_TMP+2}, v{V_TMP}, vcc
    v_and_b32 v{V_TMP}, 16, v{V_TMP+1}
    v_cmp_eq_u32 s[{S_MASK}:{S_MASK+1}], 0, v{V_TMP}
    """)
    for r in range(1, 16): P(f"v_mov_b32 v{V_ONES+r}, v{V_ONES}")
    section_check([l for l in P.L[mark:] if not l.startswith("s_waitcnt vmcnt")], "prologue")

DJ = [16, 32, 48, 64]
WOFFS = [0, 64, PLANE + 32, 2*PLANE, 2*PLANE + 64]
def tr_reads(tile):
    L = []
    for t in range(6):
        for jj in range(2):
            base = V_W1 if tile == 1 else V_W0
            off = (16*t + 4*jj)*96 + WOFFS[tile]
            if tile < 4: L.append(f"ds_read_b64_tr_b16 {a(wf(tile,t)+2*jj,2)}, v{base} offset:{off}")
            else: L.append(f"ds_read_b64_tr_b16 {v(80+4*t+2*jj,2)}, v{base} offset:{off}")
    return L
def job_mfmas(k):
    b, tile = divmod(k, 5)
    D = DJ[k % 4]; d = v(D, 16); L = []
    for t in range(6):
        xf = a(A_XF+24*b+4*t, 4)
        if tile < 3:
            L.append(f"v_mfma_f32_32x32x16_bf16 {d}, {a(wf(tile,t),4)}, {xf}, {'0' if t == 0 else d}")
        else:
            c = d if t > 0 else ('0' if tile == 3 else v(V_ONES, 16))
            L.append(f"v_mfma_f32_32x32x16_bf16 {d}, {xf}, {a(wf(tile,t),4)}, {c}")
    return L
PKN = [0]
def job_post(k):
    b, tile = divmod(k, 5)
    D = DJ[k % 4]; L = []
    def out_frag(sreg, c):
        tmp = V_PK + 4*(PKN[0] % 4); PKN[0] += 1
        for j in range(4):
            L.append(f"v_cvt_pk_bf16_f32 v{tmp+j}, v{sreg+2*j}, v{sreg+2*j+1}")
        if b < 3: L.append(f"ds_write_b128 v{V_LW}, {v(tmp,4)} offset:{c*1024}")
        so = S_KO+b if c < 4 else S_KO2+b
        L.append(f"buffer_store_dwordx4 {v(tmp,4)}, v{V_L16}, s[{S_WS}:{S_WS+3}], s{so} offen offset:{(c%4)*1024}")
    def qpart(r0, n, q0):
        for r in range(r0, r0+n, 2):
            L.append(f"v_pk_mul_f32 {v(D+r,2)}, {v(D+r,2)}, s[{S_SC}:{S_SC+1}]")
        for j in range(n//2):
            L.append(f"v_cvt_pk_bf16_f32 v{Q(b)+q0+j}, v{D+r0+2*j}, v{D+r0+2*j+1}")
    if tile == 0:
        if b < 3: L.append(f"v_add_u32 v{V_LW}, s{S_LO+b}, v{V_L16}")
        qpart(0, 16, 0)
    elif tile == 1:
        qpart(0, 8, 8); out_frag(D+8, 0)
    elif tile == 2:
        out_frag(D, 1); out_frag(D+8, 2)
    elif tile == 3:
        out_frag(D, 3); out_frag(D+8, 4)
    else:
        out_frag(D, 5); out_frag(D+8, 6)
    return L

def fcost(x):
    if x.startswith("ds_write"): return 24
    if x.startswith("buffer_store"): return 16
    if x.startswith(("buffer_", "global_")): return 12
    if x.startswith("ds_read"): return 6
    if x.startswith("s_nop"): return 4 * (int(x.split()[1]) + 1)
    if x.startswith("WAIT"): return 0
    return 4
def interleave(mf, fill, start=8, per=4, budget=None):
    out = []
    fill = list(fill)
    for i, m in enumerate(mf):
        out.append(m)
        if i >= start:
            if budget is None:
                for k in range(per):
                    if fill: out.append(fill.pop(0))
            else:
                t = 0
                while fill and (t == 0 or t + fcost(fill[0]) <= budget):
                    t += fcost(fill[0]); out.append(fill.pop(0))
    out.extend(fill)
    return out

def resolve_vm(lines, pre_ops):
    q = list(pre_ops); out = []
    for l in lines:
        if l.startswith("WAITX"):
            b = int(l.split()[1])
            idx = max(i for i, t in enumerate(q) if t == f"x{b}")
            out.append(f"s_waitcnt vmcnt({len(q) - 1 - idx})")
        else:
            out.append(l)
            if l.startswith(("buffer_", "global_")):
                m = re.search(r"a\[(\d+):", l)
                if l.startswith("buffer_load") and m and " lds" not in l and int(m.group(1)) >= A_XF: q.append(f"x{(int(m.group(1)) - A_XF)//24}")
                else: q.append("o")
    return out, q

def production():
    import re as _re
    global re
    re = _re
    def xl(b): return [f"buffer_load_dwordx4 {a(A_XF+24*b+4*t,4)}, v{V_X}, s[{S_XSRD}:{S_XSRD+3}], s{S_XO+b} offen offset:{32*t}{XPOL}" for t in range(6)]
    P("s_waitcnt vmcnt(12)")
    P.ext(mark_t("W landed", 2))
    P("s_barrier")
    L = []
    L += tr_reads(0) + tr_reads(1) + xl(2)
    L += ["s_waitcnt lgkmcnt(12)", "WAITX 0"]
    mask = [f"v_cndmask_b32 v{80+r}, 0, v{80+r}, s[{S_MASK}:{S_MASK+1}]" for r in range(24)] + [f"v_accvgpr_write_b32 {a(wf(4,0)+r)}, v{80+r}" for r in range(24)]
    def stream(k0, k1, L):
        for k in range(k0, k1):
            fill = []
            if k == 0: fill = tr_reads(2) + xl(3)
            if k == 1: fill = tr_reads(3)
            if k == 2: fill = tr_reads(4) + job_post(0)
            if k == 3: fill = job_post(1) + mask[:24]
            if k == 4: fill = mask[24:] + job_post(2)
            if k >= 5: fill = job_post(k-2)
            if k in (1, 2, 3): L.append("s_waitcnt lgkmcnt(0)")
            if k == 4:
                L.append("s_waitcnt lgkmcnt(0)")
                L.extend(mask); L.append("s_nop 1")
                fill = job_post(2)
            if k == 3: fill = job_post(1)
            if k % 5 == 0 and k > 0: L.append(f"WAITX {k//5}")
            L.extend(interleave(job_mfmas(k), fill, start=0, budget=24))
    stream(0, 15, L)
    Lc, q = resolve_vm(L, ["o"]*9 + ["x0"]*6 + ["x1"]*6)
    P.ext(Lc)
    P.ext(mark_t("M2 issued", 28))
    P(f"s_cmp_eq_u32 s{S_TYPE}, 0")
    P("s_cbranch_scc1 L_prodV")
    LH = []
    stream(15, 20, LH)
    pk = PKN[0]
    LH += ["s_nop 3"] + job_post(18) + ["s_nop 3"] + job_post(19)
    LH, _ = resolve_vm(LH, q)
    P.ext(LH)
    P("s_branch L_proddone")
    P("L_prodV:")
    PKN[0] = pk - 0
    LV = ["s_nop 3"] + job_post(13) + ["s_nop 3"] + job_post(14)
    P.ext(LV)
    P("L_proddone:")
    pre = xl(0) + xl(1)
    section_check(pre + Lc + LH, "prodH")
    section_check(pre + Lc + LV, "prodV")

def attn_setup():
    P(f"""
    global_load_dword v{V_POLL}, v{V_PADDR}, s[{S_DBG}:{S_DBG+1}] sc1
    s_mul_i32 s{S_A}, s{S_CL}, {56*TILE}
    s_add_u32 s{S_GEND}, s{S_A}, {56*TILE}
    s_add_u32 s{S_B}, s{S_START}, s{S_WAVE}
    s_add_u32 s{S_B}, s{S_B}, 8
    s_cmp_ge_u32 s{S_B}, 56
    s_cselect_b32 s{S_C}, 56, 0
    s_sub_u32 s{S_B}, s{S_B}, s{S_C}
    s_mul_i32 s{S_B}, s{S_B}, {TILE}
    s_add_u32 s{S_GOFF}, s{S_A}, s{S_B}
    s_mul_i32 s{S_LBASE}, s{S_WAVE}, {TILE}
    s_add_u32 s{S_LBASE}, s{S_LBASE}, {DSLOT}
    s_and_b32 s{S_A}, s{S_WAVE}, 1
    s_mul_i32 s{S_A}, s{S_A}, s{S_TYPE}
    """)
    for p in range(4):
        P(f"""
        s_add_u32 s{S_B}, s{S_A}, {p}
        s_and_b32 s{S_B}, s{S_B}, 3
        s_mul_i32 s{S_B}, s{S_B}, {TILE}
        v_add_u32 v{V_AP+p}, s{S_B}, v{V_L16}
        """)
    P(f"""
    s_mov_b32 s{S_DELTA}, {DSLOT}
    s_mov_b32 s{S_IT}, 0
    s_waitcnt lgkmcnt(0)
    s_barrier
    """)

def same_xcd_scc(vreg):
    return [f"v_readfirstlane_b32 s{S_A}, v{vreg}", "s_nop 3", f"s_bfe_u32 s{S_A}, s{S_A}, {(21 << 16) | 6:#x}", f"s_cmp_eq_u32 s{S_A}, s{S_EXP}"]

def first_hooks(typ, ns, B):
    t = typ
    bar0 = [f"s_cmp_eq_u32 s{S_WAVE}, 0", f"s_cbranch_scc0 L_f0_{t}"]
    bar0 += same_xcd_scc(V_POLL)
    bar0 += [f"s_cbranch_scc1 L_f0w_{t}", "buffer_wbl2 sc1", "s_waitcnt vmcnt(0)", f"L_f0w_{t}:", f"v_mov_b32 v{V_TMP}, 1", "s_nop 1"]
    bar0 += lane_exec1([f"global_atomic_add v{V_PADDR}, v{V_TMP}, s[{S_DBG}:{S_DBG+1}] sc1"])
    bar0 += [f"L_f0_{t}:"]
    bar0 += mark_t(f"bar0 {t}", 6)
    bar1 = [f"s_mov_b32 s{S_CNT}, 0x40000", f"L_f1_{t}:",
            f"v_readfirstlane_b32 s{S_A}, v{V_POLL}", "s_nop 3", f"s_and_b32 s{S_A}, s{S_A}, 7", f"s_cmp_ge_u32 s{S_A}, s{S_NCL}",
            f"s_cbranch_scc1 L_f1ok_{t}",
            f"global_load_dword v{V_POLL}, v{V_PADDR}, s[{S_DBG}:{S_DBG+1}] sc1", "s_waitcnt vmcnt(0)",
            f"s_sub_u32 s{S_CNT}, s{S_CNT}, 1", f"s_cmp_lg_u32 s{S_CNT}, 0", f"s_cbranch_scc1 L_f1_{t}",
            f"L_f1ok_{t}:"]
    bar1 += same_xcd_scc(V_POLL)
    bar1 += [f"s_cbranch_scc1 L_f1s_{t}", "buffer_inv sc1", "s_waitcnt vmcnt(0)", f"L_f1s_{t}:"]
    bar1 += mark_t(f"bar1 polled {t}", 8)
    bar1 = mark_t(f"bar1 passed {t}", 7) + bar1
    hooks = {'bar0': ("s_waitcnt vmcnt(0) lgkmcnt(0)", bar0), 'bar1': ("s_waitcnt vmcnt(0) lgkmcnt(0)", bar1)}
    hooks['ins'] = {(ns + B - 4, 3): [f"global_load_dword v{V_POLL}, v{V_PADDR}, s[{S_DBG}:{S_DBG+1}] sc1"]}
    if typ == 'H':
        wod = [f"s_mul_i32 s{S_A}, s{S_WAVE}, {5*1024}", f"s_add_u32 m0, s{S_A}, {WOIMG}"]
        wod += [f"buffer_load_dwordx4 v{V_L16}, s[{S_WO}:{S_WO+3}], s{S_A} offen offset:{c*1024} lds" for c in range(4)]
        wod += [f"s_add_u32 s{S_A}, s{S_A}, 4096", f"s_add_u32 m0, s{S_A}, {WOIMG}", f"buffer_load_dwordx4 v{V_L16}, s[{S_WO}:{S_WO+3}], s{S_A} offen lds"]
        adr = [f"v_lshrrev_b32 v{V_TMP+1}, 4, v{V_L16}", f"v_lshrrev_b32 v{V_W1}, 5, v{V_TMP+1}", f"v_lshlrev_b32 v{V_W1}, 2, v{V_W1}",
               f"v_and_b32 v{V_LW}, 15, v{V_TMP+1}", f"v_lshrrev_b32 v{V_LW}, 2, v{V_LW}", f"v_add_u32 v{V_W1}, v{V_W1}, v{V_LW}",
               f"v_mul_u32_u24 v{V_W0}, 192, v{V_W1}", f"v_lshrrev_b32 v{V_W1}, 4, v{V_TMP+1}", f"v_and_b32 v{V_W1}, 1, v{V_W1}",
               f"v_lshlrev_b32 v{V_W1}, 5, v{V_W1}", f"v_add_u32 v{V_W0}, v{V_W0}, v{V_W1}", f"v_and_b32 v{V_LW}, 3, v{V_TMP+1}",
               f"v_lshlrev_b32 v{V_LW}, 3, v{V_LW}", f"v_add_u32 v{V_W0}, v{V_W0}, v{V_LW}", f"v_add_u32 v{V_W0}, {WOIMG}, v{V_W0}"]
        trs = []
        for m in range(3):
            for tt in range(6):
                for jj in range(2):
                    trs.append(f"ds_read_b64_tr_b16 {a(A_WO+(m*6+tt)*4+2*jj,2)}, v{V_W0} offset:{(16*tt + 8*jj)*192 + 64*m}")
        hooks['chain'] = {1: wod + adr, B + 1: trs}
    return hooks

def poll2_addr():
    return [f"s_mul_i32 s{S_A}, s{S_J}, 7", f"v_lshrrev_b32 v{V_PADDR}, 4, v{V_L16}", f"v_min_u32 v{V_PADDR}, 6, v{V_PADDR}",
            f"v_add_u32 v{V_PADDR}, s{S_A}, v{V_PADDR}", f"v_add_u32 v{V_PADDR}, {DOFF}, v{V_PADDR}", f"v_lshlrev_b32 v{V_PADDR}, 2, v{V_PADDR}"]

STUBS = []
def steady_hooks(typ):
    if typ != 'H': return {}
    h = {}
    h['bar0'] = ("s_waitcnt vmcnt(0) lgkmcnt(0)", [f"s_cmp_eq_u32 s{S_IT}, {NSTAGE-2}", "s_cbranch_scc1 L_stub0", "L_stub0_ret:"])
    h['bar1'] = ("s_waitcnt vmcnt(0) lgkmcnt(0)", [f"s_cmp_eq_u32 s{S_IT}, {NSTAGE-2}", "s_cbranch_scc1 L_stub1", "L_stub1_ret:"])
    st = ["L_stub0:"] + poll2_addr() + [f"global_load_dword v{V_POLL}, v{V_PADDR}, s[{S_DBG}:{S_DBG+1}] sc1", "s_branch L_stub0_ret"]
    st += ["L_stub1:", "s_waitcnt vmcnt(0)", f"s_mov_b32 s{S_CNT}, 0x40000", "L_p2:",
           f"v_bfe_u32 v{V_POLL}, v{V_POLL}, 3, 3", f"v_cmp_gt_u32 vcc, 5, v{V_POLL}", "s_nop 3", "s_cmp_eq_u64 vcc, 0", "s_cbranch_scc1 L_p2ok",
           f"global_load_dword v{V_POLL}, v{V_PADDR}, s[{S_DBG}:{S_DBG+1}] sc1", "s_waitcnt vmcnt(0)",
           f"s_sub_u32 s{S_CNT}, s{S_CNT}, 1", f"s_cmp_lg_u32 s{S_CNT}, 0", "s_cbranch_scc1 L_p2", "L_p2ok:"]
    for q in range(4):
        for t in range(3):
            st.append(f"buffer_load_dwordx4 {a(A_OV+12*q+4*t,4)}, v{V_L16}, s[{S_WS}:{S_WS+3}], s{S_OVO+q} offen offset:{t*1024} sc1")
    st.append("s_branch L_stub1_ret")
    STUBS.extend(st)
    return h

def main_loops():
    P(f"s_cmp_eq_u32 s{S_TYPE}, 0")
    P("s_cbranch_scc1 L_startV")
    for typ in "HV":
        r0 = build(typ, typ)
        f = build(typ, typ, 'first', first_hooks(typ, r0['ns'], r0['B']))
        r = build(typ, typ, 'steady', steady_hooks(typ))
        if typ == 'V': P("L_startV:")
        P.ext(f['pre']); P.ext(f['body']); P.ext(f['tail'][:-1])
        P.ext(mark_t(f"first iter done {typ}", 9))
        P.ext(span(3))
        P(".p2align 6")
        P(f"L_loop_{typ}:")
        P.ext(r['body'])
        if TIMING:
            P(f"""
            s_memrealtime s[56:57]
            s_memtime s[58:59]
            s_lshr_b32 s57, s{S_IT}, 1
            s_waitcnt lgkmcnt(0)
            s_lshr_b32 s57, s{S_IT}, 1
            s_add_u32 m0, s57, 16
            s_nop 3
            v_writelane_b32 v14, s56, m0
            v_writelane_b32 v15, s58, m0
            """)
        P.ext(r['tail']); P.ext(r['post'])
        P(f"s_branch L_epi{typ}")
        nb = lambda L: [x for x in L if not x.startswith(("s_cbranch", "s_branch"))]
        section_check(f['pre'] + nb(f['body']) + f['tail'][:-1] + nb(r['body']) + r['tail'][:-1] + nb(r['body']) + r['post'], "loop" + typ)

def norm_ops(q):
    o = O(q)
    L = [f"v_rcp_f32 v{V_TMP}, v{o+24}", "s_nop 0"]
    for r in range(0, 24, 2):
        L.append(f"v_pk_mul_f32 {v(o+r,2)}, {v(o+r,2)}, {v(V_TMP,2)} op_sel_hi:[1,0]")
    for j in range(12):
        L.append(f"v_cvt_pk_bf16_f32 v{o+j}, v{o+2*j}, v{o+2*j+1}")
    return L

def epilogue_V():
    P("L_epiV:")
    P.ext(mark_t("V loop end", 10))
    mark = len(P.L)
    P("s_nop 7\ns_nop 7")
    for q in range(3):
        P.ext(norm_ops(q))
        for t in range(3):
            P(f"buffer_store_dwordx4 {v(O(q)+4*t,4)}, v{V_L16}, s[{S_WS}:{S_WS+3}], s{S_OVO+q} offen offset:{t*1024} sc1")
    P("s_waitcnt vmcnt(0)")
    P("s_barrier")
    section_check(P.L[mark:], "epiV")
    P(f"s_cmp_eq_u32 s{S_WAVE}, 0\ns_cbranch_scc0 L_sig2\nv_mov_b32 v{V_TMP}, 8\ns_lshl_b32 s{S_B}, s{S_CL}, 2\ns_add_u32 s{S_B}, s{S_B}, {DOFF*4}\nv_mov_b32 v{V_PADDR}, s{S_B}\ns_nop 1")
    P.ext(lane_exec1([f"global_atomic_add v{V_PADDR}, v{V_TMP}, s[{S_DBG}:{S_DBG+1}] sc1"]))
    P("L_sig2:")
    P.ext(mark_t("V epi end"))
    P.ext(span(6))
    P("s_branch L_exit2" if TIMING else "s_branch L_exit")

def epilogue_H():
    P("L_epiH:")
    P.ext(mark_t("H loop end", 10))
    P.ext(span(4))
    mark = len(P.L)
    DS = [208, 144]
    def M(q):
        D = DS[q % 2]; L = []
        for t in range(6):
            for m in range(3):
                bsrc = v(O(q)+4*t, 4) if t < 3 else a(A_OV+12*q+4*(t-3), 4)
                d = v(D+16*m, 16)
                L.append(f"v_mfma_f32_32x32x16_bf16 {d}, {a(A_WO+(m*6+t)*4,4)}, {bsrc}, {'0' if t == 0 else d}")
        return L
    def F(q):
        D = DS[q % 2]; L = []
        for m in range(3):
            for pr in range(2):
                tmp = 192 + 4*((2*m+pr) % 4)
                for j in range(4):
                    L.append(f"v_cvt_pk_bf16_f32 v{tmp+j}, v{D+16*m+8*pr+2*j}, v{D+16*m+8*pr+2*j+1}")
                L.append("s_nop 1")
                L.append(f"v_permlane32_swap_b32 v{tmp}, v{tmp+2}")
                L.append(f"v_permlane32_swap_b32 v{tmp+1}, v{tmp+3}")
                L.append(f"buffer_store_dwordx4 {v(tmp,4)}, v{V_X}, s[{S_OUT}:{S_OUT+3}], s{S_XO+q} offen offset:{64*m+32*pr}")
        return L
    P(f"""
    s_lshr_b32 s{S_A}, s{S_WAVE}, 1
    s_mul_i32 s{S_A}, s{S_A}, {TILE}
    s_add_u32 s{S_A}, s{S_A}, {XCHG}
    v_add_u32 v{V_LW}, s{S_A}, v{V_L16}
    s_and_b32 s{S_B}, s{S_WAVE}, 1
    s_nop 7
    s_nop 7
    s_cmp_eq_u32 s{S_B}, 0
    s_cbranch_scc1 L_xw_skip
    """)
    for c in range(7):
        P(f"ds_write_b128 v{V_LW}, {v(O(3)+4*c,4)} offset:{c*1024}")
    P("L_xw_skip:")
    P.ext(norm_ops(0))
    P("s_waitcnt lgkmcnt(0)")
    P("s_barrier")
    P("s_waitcnt vmcnt(0)")
    P.ext(interleave(M(0), norm_ops(1), start=0, per=2))
    P.ext(interleave(M(1), norm_ops(2) + F(0), start=0, per=4))
    m1 = len(P.L)
    P(f"s_cmp_eq_u32 s{S_B}, 0")
    P("s_cbranch_scc0 L_epi_odd")
    me = len(P.L)
    xr = [f"ds_read_b128 {v(O(0)+4*c,4)}, v{V_LW} offset:{c*1024}" for c in range(7)]
    xa = ["s_waitcnt lgkmcnt(0)"] + [f"v_add_f32 v{O(3)+r}, v{O(3)+r}, v{O(0)+r}" for r in range(28)]
    P.ext(interleave(M(2), xr + ["s_nop 0"]*2 + F(1)[:18] + xa + norm_ops(3) + F(1)[18:], start=0, per=6))
    P("s_nop 1")
    P.ext(interleave(M(3), ["s_nop 0"]*8 + F(2), start=0, per=4))
    P("s_nop 7\ns_nop 7")
    P.ext(F(3))
    section_check(P.L[mark:m1] + P.L[me:], "epiH_even")
    P.ext(mark_t("H even end", 12))
    P.ext(span(1))
    P("s_branch L_exit2" if TIMING else "s_branch L_exit")
    P("L_epi_odd:")
    mo = len(P.L)
    P.ext(interleave(M(2), ["s_nop 0"]*8 + F(1), start=0, per=4))
    P("s_nop 7\ns_nop 7")
    P.ext(F(2))
    section_check(P.L[mark:m1] + P.L[mo:], "epiH_odd")
    P.ext(mark_t("H odd end", 11))

prologue()
production()
P.ext(span(2)); P.ext(span(5, True))
P.ext(mark_t("production done", 5))
attn_setup()
main_loops()
epilogue_V()
epilogue_H()
if TIMING:
    P("L_exit2:")
    P(f"""
    s_lshl_b32 s57, s{S_WGID}, 2
    s_add_u32 s57, s57, s{S_WAVE}
    s_lshl_b32 s57, s57, 8
    s_add_u32 s57, s57, {TMBASE}
    v_lshrrev_b32 v13, 1, v{V_L16}
    s_mov_b64 exec, 0xffffffff
    buffer_store_dwordx2 v[14:15], v13, s[{S_WS}:{S_WS+3}], s57 offen
    """)
P("L_exit:")
P("s_endpgm")
P.ext(STUBS)

if CHK:
    print("\n".join(CHK[:40])); print(len(CHK), "problems"); sys.exit(1)
hdr = open("standalone__window_attn_cswin__vision.s.ref").read().split("; Override launch")[0]
src = hdr + f"; @launch grid=(256,1,1) block=(256,1,1) lds={LDSBYTES}\n" + '.amdgcn_target "amdgcn-amd-amdhsa--gfx950"\n.text\n' + kernel_header(NAME) + P.text() + kernel_footer(NAME, 512, 256, 100, 48)
out = os.environ.get("OUT", "kernel.s")
open(out, "w").write(src)
print("written", out, len(P.L), "lines")
```

```python
import sys, os
from common import *
import mainloop as ML

XPOL = os.environ.get("XPOL", "")
NAME = "standalone__window_attn_cswin__vision_kernel"
STOP = os.environ.get("STOP", "")
TIMING = os.environ.get("TIMING", "")
HSPAN = os.environ.get("HSPAN", "")
DOFF = 8 if HSPAN else 0
PERMUTE = os.environ.get("PERMUTE", "")
XBYTES = 224*224*96*2
WBYTES = 96*288*2
WOBYTES = 96*96*2
KVBYTES = 56*56*TILE
OVBASE = 0x1600000
OVBYTES = 56*28*3072
WSBYTES = 0x1E00000
TMBASE = 0x1C00000
assert OVBASE >= KVBYTES
WIMG = 3*STAGE
PLANE = 9216
XCHG = RING
WOIMG = 163840 - WOBYTES
LDSBYTES = 163840
SCALE_HEX = 0x3e553b95

S_SC = 46
S_XO = 68
S_TB = 72
S_KO = 76
S_KO2 = 80
S_LO = 84
S_OVO = 88
S_MASK = 92
S_CNT = 94
S_EXP = 95
S_NCL = 29

A_XF = 160
A_WF = 40
A_WO = 64
A_OV = 140
V_X = 6; V_W0 = 7; V_W1 = 8; V_LW = 9
V_TMP = 10
V_POLL = 12
V_PADDR = 13
DSET = [16, 96]
V_ONES = 176
V_PK = 192

P = Prog()
CHK = []
NMARK = [0]
def mark_t(name, idx=None):
    if not TIMING: return []
    if idx is not None: NMARK[0] = idx
    i = NMARK[0]; NMARK[0] += 1
    print("mark", i, name)
    return ["s_memrealtime s[56:57]", "s_memtime s[58:59]", "s_waitcnt lgkmcnt(0)",
            f"v_writelane_b32 v14, s56, {i}", f"v_writelane_b32 v15, s58, {i}"]
SPN = [0]
def span(slot, neg=False):
    if not HSPAN: return []
    if slot == 'start':
        return ["s_memrealtime s[96:97]", "s_waitcnt lgkmcnt(0)"]
    SPN[0] += 1
    lab = f"L_span{SPN[0]}"
    L = [f"s_and_b32 s56, s{S_WGID}, 0xf7", "s_cmp_eq_u32 s56, 0xf0", f"s_cselect_b32 s57, {16 + slot*4}, {slot*4}",
         f"s_cselect_b32 s58, 0xf0, 0", f"s_cmp_eq_u32 s56, s58", f"s_cbranch_scc0 {lab}",
         f"s_and_b32 s58, s{S_WGID}, 8", f"s_or_b32 s58, s58, s{S_WAVE}", "s_cmp_eq_u32 s58, 0", f"s_cbranch_scc0 {lab}",
         "s_memrealtime s[58:59]", "s_waitcnt lgkmcnt(0)", "s_sub_u32 s58, s58, s96",
         "v_mov_b32 v14, s58", "v_mov_b32 v15, s57", "s_mov_b64 s[98:99], exec", "s_mov_b64 exec, 1",
         f"global_store_dword v15, v14, s[{S_DBG}:{S_DBG+1}]", "s_mov_b64 exec, s[98:99]", f"{lab}:"]
    return L
def section_check(lines, name):
    CHK.extend(check_linear([l for l in lines], name))
def wf(tile, t): return A_WF + (tile*6 + t)*4

def lane_exec1(lines):
    return [f"s_mov_b64 s[{S_MASK}:{S_MASK+1}], exec", "s_mov_b64 exec, 1"] + lines + [f"s_mov_b64 exec, s[{S_MASK}:{S_MASK+1}]"]

def prologue():
    P(f"""
    s_load_dwordx4 s[4:7], s[0:1], 0
    s_load_dwordx4 s[60:63], s[0:1], 16
    s_load_dwordx4 s[64:67], s[0:1], 32
    v_lshrrev_b32 v{V_TMP}, 6, v0
    v_and_b32 v{V_TMP+1}, 63, v0
    v_lshlrev_b32 v{V_L16}, 4, v{V_TMP+1}
    v_readfirstlane_b32 s{S_WAVE}, v{V_TMP}
    """)
    if PERMUTE:
        P(f"s_cmp_ge_u32 s{S_WGID}, 256\ns_cbranch_scc1 L_exit")
        P(f"s_lshr_b32 s{S_A}, s{S_WGID}, 3\ns_lshl_b32 s{S_WGID}, s{S_WGID}, 5\ns_or_b32 s{S_WGID}, s{S_WGID}, s{S_A}\ns_and_b32 s{S_WGID}, s{S_WGID}, 255")
    role_decode(P, "L_exit")
    mark = len(P.L)
    P(f"""
    v_and_b32 v{V_TMP}, 31, v{V_TMP+1}
    v_lshrrev_b32 v{V_TMP+2}, 3, v{V_TMP}
    v_and_b32 v{V_TMP+3}, 7, v{V_TMP}
    v_mul_u32_u24 v{V_TMP+2}, {224*192}, v{V_TMP+2}
    v_mul_u32_u24 v{V_TMP+3}, 192, v{V_TMP+3}
    v_add_u32 v{V_X}, v{V_TMP+2}, v{V_TMP+3}
    v_lshrrev_b32 v{V_TMP+2}, 5, v{V_TMP+1}
    v_lshlrev_b32 v{V_TMP+3}, 4, v{V_TMP+2}
    v_add_u32 v{V_X}, v{V_X}, v{V_TMP+3}
    """)
    def geom(b):
        if b < 3:
            P(f"s_mul_i32 s{S_A}, s{S_WAVE}, 3\ns_add_u32 s{S_A}, s{S_A}, {b}")
            P(f"""
            s_lshr_b32 s{S_B}, s{S_A}, 2
            s_mul_i32 s{S_B}, s{S_B}, {STAGE}
            s_and_b32 s{S_C}, s{S_A}, 3
            s_mul_i32 s{S_C}, s{S_C}, {TILE}
            s_add_u32 s{S_LO+b}, s{S_B}, s{S_C}
            """)
        else:
            P(f"s_lshr_b32 s{S_A}, s{S_WAVE}, 1\ns_add_u32 s{S_A}, s{S_A}, 12")
        P(f"""
        s_add_u32 s{S_A}, s{S_A}, s{S_START}
        s_cmp_ge_u32 s{S_A}, 56
        s_cselect_b32 s{S_B}, 56, 0
        s_cselect_b32 s{S_D}, 1, 0
        s_sub_u32 s{S_TB+b}, s{S_A}, s{S_B}
        s_and_b32 s{S_A}, s{S_TB+b}, 1
        s_lshl_b32 s{S_B}, s{S_STRIPE}, 1
        s_add_u32 s{S_A}, s{S_A}, s{S_B}
        s_lshr_b32 s{S_B}, s{S_TB+b}, 1
        s_cmp_eq_u32 s{S_TYPE}, 0
        s_cselect_b32 s{S_A}, s{S_TB+b}, s{S_A}
        s_cselect_b32 s{S_B}, s{S_STRIPE}, s{S_B}
        s_mul_i32 s{S_C}, s{S_A}, {4*224*192}
        s_mul_i32 s{S_XO+b}, s{S_B}, {8*192}
        s_add_u32 s{S_XO+b}, s{S_XO+b}, s{S_C}
        """)
        def rest():
            P(f"""
            s_and_b32 s{S_A}, s{S_TB+b}, 1
            s_lshl_b32 s{S_B}, s{S_STRIPE}, 1
            s_add_u32 s{S_A}, s{S_A}, s{S_B}
            s_lshr_b32 s{S_B}, s{S_TB+b}, 1
            s_cmp_eq_u32 s{S_TYPE}, 0
            s_cselect_b32 s{S_A}, s{S_TB+b}, s{S_A}
            s_cselect_b32 s{S_B}, s{S_STRIPE}, s{S_B}
            s_mul_i32 s{S_A}, s{S_A}, 28
            s_add_u32 s{S_A}, s{S_A}, s{S_B}
            s_mul_i32 s{S_A}, s{S_A}, 3072
            s_add_u32 s{S_OVO+b}, s{S_A}, {OVBASE}
            s_mul_i32 s{S_B}, s{S_CL}, 56
            s_add_u32 s{S_B}, s{S_B}, s{S_TB+b}
            s_mul_i32 s{S_KO+b}, s{S_B}, {TILE}
            s_add_u32 s{S_KO2+b}, s{S_KO+b}, 4096
            """)
        return rest
    def xloads(b):
        for t in range(6):
            P(f"buffer_load_dwordx4 {a(A_XF+24*b+4*t,4)}, v{V_X}, s[{S_XSRD}:{S_XSRD+3}], s{S_XO+b} offen offset:{32*t}{XPOL}")
    P(f"""
    s_lshl_b32 s{S_A}, s{S_WAVE}, 6
    v_add_u32 v{V_TMP}, s{S_A}, v{V_TMP+1}
    v_mul_u32_u24 v{V_TMP+2}, 10923, v{V_TMP}
    v_lshrrev_b32 v{V_TMP+2}, 16, v{V_TMP+2}
    v_mul_u32_u24 v{V_TMP+3}, 6, v{V_TMP+2}
    v_sub_u32 v{V_TMP+3}, v{V_TMP}, v{V_TMP+3}
    v_mul_u32_u24 v{V_TMP+2}, 576, v{V_TMP+2}
    v_lshlrev_b32 v{V_TMP+3}, 4, v{V_TMP+3}
    v_add_u32 v{V_LW}, v{V_TMP+2}, v{V_TMP+3}
    s_xor_b32 s{S_B}, s{S_TYPE}, 1
    s_mul_i32 s{S_B}, s{S_B}, 96
    s_lshl_b32 s{S_A}, s{S_WAVE}, 10
    s_add_u32 s{S_A}, s{S_A}, {WIMG}
    s_waitcnt lgkmcnt(0)
    s_mov_b32 s{S_W}, s6
    s_and_b32 s{S_W+1}, s7, 0xffff
    s_mov_b32 s{S_W+2}, {WBYTES}
    s_mov_b32 s{S_W+3}, 0x20000
    s_mov_b32 s{S_XSRD}, s4
    s_and_b32 s{S_XSRD+1}, s5, 0xffff
    s_mov_b32 s{S_XSRD+2}, {XBYTES}
    s_mov_b32 s{S_XSRD+3}, 0x20000
    """)
    P.ext(mark_t("start"))
    P.ext(span('start'))
    P(f"s_cmp_eq_u32 s{S_WAVE}, 3\ns_cbranch_scc1 L_nowdma")
    for seg in range(3):
        for k in range(3):
            P(f"s_add_u32 m0, s{S_A}, {seg*PLANE + k*3072}")
            P(f"s_add_u32 s{S_C}, s{S_B}, {seg*192 + k*32*576}")
            P(f"buffer_load_dwordx4 v{V_LW}, s[{S_W}:{S_W+3}], s{S_C} offen lds")
    P("L_nowdma:")
    rest0 = geom(0); xloads(0)
    rests = []
    r = geom(1); xloads(1); rests.append(r)
    P.ext(mark_t("issued loads"))
    rests.append(geom(2)); rests.append(geom(3))
    P(f"""
    s_mov_b32 s{S_WO}, s60
    s_and_b32 s{S_WO+1}, s61, 0xffff
    s_mov_b32 s{S_WO+2}, {WOBYTES}
    s_mov_b32 s{S_WO+3}, 0x20000
    s_mov_b32 s{S_OUT}, s62
    s_and_b32 s{S_OUT+1}, s63, 0xffff
    s_mov_b32 s{S_OUT+2}, {XBYTES}
    s_mov_b32 s{S_OUT+3}, 0x20000
    s_mov_b32 s{S_DBG}, s64
    s_mov_b32 s{S_DBG+1}, s65
    s_mov_b32 s{S_WS}, s66
    s_and_b32 s{S_WS+1}, s67, 0xffff
    s_mov_b32 s{S_WS+2}, {WSBYTES}
    s_mov_b32 s{S_WS+3}, 0x20000
    s_mov_b32 s{S_DM}, s66
    s_and_b32 s{S_DM+1}, s67, 0xffff
    s_mov_b32 s{S_DM+2}, {KVBYTES}
    s_mov_b32 s{S_DM+3}, 0x20000
    s_mov_b32 s{S_NREC}, {KVBYTES}
    s_mov_b32 s{S_SC}, {SCALE_HEX:#x}
    s_mov_b32 s{S_SC+1}, {SCALE_HEX:#x}
    s_sub_u32 s{S_NCL}, 5, s{S_TYPE}
    """)
    P(f"""
    s_getreg_b32 s{S_A}, hwreg(HW_REG_XCC_ID, 0, 4)
    s_mul_i32 s{S_B}, s{S_A}, s{S_A}
    s_lshl_b32 s{S_B}, s{S_B}, 10
    s_lshl_b32 s{S_A}, s{S_A}, 3
    s_add_u32 s{S_A}, s{S_A}, s{S_B}
    s_add_u32 s{S_A}, s{S_A}, 1
    s_mul_i32 s{S_EXP}, s{S_A}, s{S_NCL}
    s_lshl_b32 s{S_A}, s{S_A}, 6
    s_lshl_b32 s{S_B}, s{S_CL}, 2
    s_add_u32 s{S_B}, s{S_B}, {DOFF*4}
    v_mov_b32 v{V_PADDR}, s{S_B}
    v_mov_b32 v{V_TMP}, s{S_A}
    s_cmp_eq_u32 s{S_WAVE}, 0
    s_cbranch_scc0 L_noarr
    """)
    P.ext(lane_exec1([f"global_atomic_add v{V_PADDR}, v{V_TMP}, s[{S_DBG}:{S_DBG+1}] sc1"]))
    P("L_noarr:")
    rest0()
    for r in rests: r()
    for b in range(3):
        P(f"""
        s_mul_i32 s{S_A}, s{S_WAVE}, 3
        s_add_u32 s{S_A}, s{S_A}, s{S_START}
        s_add_u32 s{S_A}, s{S_A}, {b}
        s_cmp_ge_u32 s{S_A}, 56
        s_cselect_b32 s{S_OVO+b}, 0x7fff0000, s{S_OVO+b}
        """)
    P(f"""
    v_lshrrev_b32 v{V_TMP+1}, 4, v{V_L16}
    v_lshrrev_b32 v{V_TMP+2}, 5, v{V_TMP+1}
    v_lshlrev_b32 v{V_TMP+2}, 3, v{V_TMP+2}
    v_and_b32 v{V_TMP}, 15, v{V_TMP+1}
    v_lshrrev_b32 v{V_TMP}, 2, v{V_TMP}
    v_add_u32 v{V_TMP+2}, v{V_TMP+2}, v{V_TMP}
    v_mul_u32_u24 v{V_W0}, 96, v{V_TMP+2}
    v_lshrrev_b32 v{V_TMP+2}, 4, v{V_TMP+1}
    v_and_b32 v{V_TMP+2}, 1, v{V_TMP+2}
    v_lshlrev_b32 v{V_TMP}, 5, v{V_TMP+2}
    v_add_u32 v{V_W0}, v{V_W0}, v{V_TMP}
    v_and_b32 v{V_TMP}, 3, v{V_TMP+1}
    v_lshlrev_b32 v{V_TMP}, 3, v{V_TMP}
    v_add_u32 v{V_W0}, v{V_W0}, v{V_TMP}
    v_add_u32 v{V_W0}, {WIMG}, v{V_W0}
    v_mul_u32_u24 v{V_TMP+2}, {PLANE - 96}, v{V_TMP+2}
    v_add_u32 v{V_W1}, v{V_W0}, v{V_TMP+2}
    v_and_b32 v{V_TMP}, 27, v{V_TMP+1}
    v_cmp_eq_u32 vcc, 16, v{V_TMP}
    v_mov_b32 v{V_TMP+2}, 0
    v_mov_b32 v{V_TMP}, 1.0
    v_cndmask_b32 v{V_ONES}, v{V_TMP+2}, v{V_TMP}, vcc
    v_and_b32 v{V_TMP}, 16, v{V_TMP+1}
    v_cmp_eq_u32 s[{S_MASK}:{S_MASK+1}], 0, v{V_TMP}
    """)
    for r in range(1, 16): P(f"v_mov_b32 v{V_ONES+r}, v{V_ONES}")
    section_check([l for l in P.L[mark:] if not l.startswith("s_waitcnt vmcnt")], "prologue")

DJ = [16, 32, 48, 64]
WOFFS = [0, 64, PLANE + 32, 2*PLANE, 2*PLANE + 64]
def tr_reads(tile):
    L = []
    for t in range(6):
        for jj in range(2):
            base = V_W1 if tile == 1 else V_W0
            off = (16*t + 4*jj)*96 + WOFFS[tile]
            if tile < 4: L.append(f"ds_read_b64_tr_b16 {a(wf(tile,t)+2*jj,2)}, v{base} offset:{off}")
            else: L.append(f"ds_read_b64_tr_b16 {v(80+4*t+2*jj,2)}, v{base} offset:{off}")
    return L
def job_mfmas(k):
    b, tile = divmod(k, 5)
    D = DJ[k % 4]; d = v(D, 16); L = []
    for t in range(6):
        xf = a(A_XF+24*b+4*t, 4)
        if tile < 3:
            L.append(f"v_mfma_f32_32x32x16_bf16 {d}, {a(wf(tile,t),4)}, {xf}, {'0' if t == 0 else d}")
        else:
            c = d if t > 0 else ('0' if tile == 3 else v(V_ONES, 16))
            L.append(f"v_mfma_f32_32x32x16_bf16 {d}, {xf}, {a(wf(tile,t),4)}, {c}")
    return L
PKN = [0]
def job_post(k):
    b, tile = divmod(k, 5)
    D = DJ[k % 4]; L = []
    def out_frag(sreg, c):
        tmp = V_PK + 4*(PKN[0] % 4); PKN[0] += 1
        for j in range(4):
            L.append(f"v_cvt_pk_bf16_f32 v{tmp+j}, v{sreg+2*j}, v{sreg+2*j+1}")
        if b < 3: L.append(f"ds_write_b128 v{V_LW}, {v(tmp,4)} offset:{c*1024}")
        so = S_KO+b if c < 4 else S_KO2+b
        L.append(f"buffer_store_dwordx4 {v(tmp,4)}, v{V_L16}, s[{S_WS}:{S_WS+3}], s{so} offen offset:{(c%4)*1024}")
    def qpart(r0, n, q0):
        for r in range(r0, r0+n, 2):
            L.append(f"v_pk_mul_f32 {v(D+r,2)}, {v(D+r,2)}, s[{S_SC}:{S_SC+1}]")
        for j in range(n//2):
            L.append(f"v_cvt_pk_bf16_f32 v{Q(b)+q0+j}, v{D+r0+2*j}, v{D+r0+2*j+1}")
    if tile == 0:
        if b < 3: L.append(f"v_add_u32 v{V_LW}, s{S_LO+b}, v{V_L16}")
        qpart(0, 16, 0)
    elif tile == 1:
        qpart(0, 8, 8); out_frag(D+8, 0)
    elif tile == 2:
        out_frag(D, 1); out_frag(D+8, 2)
    elif tile == 3:
        out_frag(D, 3); out_frag(D+8, 4)
    else:
        out_frag(D, 5); out_frag(D+8, 6)
    return L

def fcost(x):
    if x.startswith("ds_write"): return 24
    if x.startswith("buffer_store"): return 16
    if x.startswith(("buffer_", "global_")): return 12
    if x.startswith("ds_read"): return 6
    if x.startswith("s_nop"): return 4 * (int(x.split()[1]) + 1)
    if x.startswith("WAIT"): return 0
    return 4
def interleave(mf, fill, start=8, per=4, budget=None):
    out = []
    fill = list(fill)
    for i, m in enumerate(mf):
        out.append(m)
        if i >= start:
            if budget is None:
                for k in range(per):
                    if fill: out.append(fill.pop(0))
            else:
                t = 0
                while fill and (t == 0 or t + fcost(fill[0]) <= budget):
                    t += fcost(fill[0]); out.append(fill.pop(0))
    out.extend(fill)
    return out

def resolve_vm(lines, pre_ops):
    q = list(pre_ops); out = []
    for l in lines:
        if l.startswith("WAITX"):
            b = int(l.split()[1])
            idx = max(i for i, t in enumerate(q) if t == f"x{b}")
            out.append(f"s_waitcnt vmcnt({len(q) - 1 - idx})")
        else:
            out.append(l)
            if l.startswith(("buffer_", "global_")):
                m = re.search(r"a\[(\d+):", l)
                if l.startswith("buffer_load") and m and " lds" not in l and int(m.group(1)) >= A_XF: q.append(f"x{(int(m.group(1)) - A_XF)//24}")
                else: q.append("o")
    return out, q

def production():
    import re as _re
    global re
    re = _re
    def xl(b): return [f"buffer_load_dwordx4 {a(A_XF+24*b+4*t,4)}, v{V_X}, s[{S_XSRD}:{S_XSRD+3}], s{S_XO+b} offen offset:{32*t}{XPOL}" for t in range(6)]
    P("s_waitcnt vmcnt(12)")
    P.ext(mark_t("W landed", 2))
    P("s_barrier")
    L = []
    L += tr_reads(0) + tr_reads(1) + xl(2)
    L += ["s_waitcnt lgkmcnt(12)", "WAITX 0"]
    mask = [f"v_cndmask_b32 v{80+r}, 0, v{80+r}, s[{S_MASK}:{S_MASK+1}]" for r in range(24)] + [f"v_accvgpr_write_b32 {a(wf(4,0)+r)}, v{80+r}" for r in range(24)]
    def stream(k0, k1, L):
        for k in range(k0, k1):
            fill = []
            if k == 0: fill = tr_reads(2) + xl(3)
            if k == 1: fill = tr_reads(3)
            if k == 2: fill = tr_reads(4) + job_post(0)
            if k == 3: fill = job_post(1) + mask[:24]
            if k == 4: fill = mask[24:] + job_post(2)
            if k >= 5: fill = job_post(k-2)
            if k in (1, 2, 3): L.append("s_waitcnt lgkmcnt(0)")
            if k == 4:
                L.append("s_waitcnt lgkmcnt(0)")
                L.extend(mask); L.append("s_nop 1")
                fill = job_post(2)
            if k == 3: fill = job_post(1)
            if k % 5 == 0 and k > 0: L.append(f"WAITX {k//5}")
            L.extend(interleave(job_mfmas(k), fill, start=0, budget=24))
    stream(0, 15, L)
    Lc, q = resolve_vm(L, ["o"]*9 + ["x0"]*6 + ["x1"]*6)
    P.ext(Lc)
    P.ext(mark_t("M2 issued", 28))
    P(f"s_cmp_eq_u32 s{S_TYPE}, 0")
    P("s_cbranch_scc1 L_prodV")
    LH = []
    stream(15, 20, LH)
    pk = PKN[0]
    LH += ["s_nop 3"] + job_post(18) + ["s_nop 3"] + job_post(19)
    LH, _ = resolve_vm(LH, q)
    P.ext(LH)
    P("s_branch L_proddone")
    P("L_prodV:")
    PKN[0] = pk - 0
    LV = ["s_nop 3"] + job_post(13) + ["s_nop 3"] + job_post(14)
    P.ext(LV)
    P("L_proddone:")
    pre = xl(0) + xl(1)
    section_check(pre + Lc + LH, "prodH")
    section_check(pre + Lc + LV, "prodV")

def attn_setup():
    P(f"""
    global_load_dword v{V_POLL}, v{V_PADDR}, s[{S_DBG}:{S_DBG+1}] sc1
    s_mul_i32 s{S_A}, s{S_CL}, {56*TILE}
    s_add_u32 s{S_GEND}, s{S_A}, {56*TILE}
    s_add_u32 s{S_B}, s{S_START}, s{S_WAVE}
    s_add_u32 s{S_B}, s{S_B}, 8
    s_cmp_ge_u32 s{S_B}, 56
    s_cselect_b32 s{S_C}, 56, 0
    s_sub_u32 s{S_B}, s{S_B}, s{S_C}
    s_mul_i32 s{S_B}, s{S_B}, {TILE}
    s_add_u32 s{S_GOFF}, s{S_A}, s{S_B}
    s_mul_i32 s{S_LBASE}, s{S_WAVE}, {TILE}
    s_add_u32 s{S_LBASE}, s{S_LBASE}, {DSLOT}
    s_and_b32 s{S_A}, s{S_WAVE}, 1
    s_mul_i32 s{S_A}, s{S_A}, s{S_TYPE}
    """)
    for p in range(4):
        P(f"""
        s_add_u32 s{S_B}, s{S_A}, {p}
        s_and_b32 s{S_B}, s{S_B}, 3
        s_mul_i32 s{S_B}, s{S_B}, {TILE}
        v_add_u32 v{V_AP+p}, s{S_B}, v{V_L16}
        """)
    P(f"""
    s_mov_b32 s{S_DELTA}, {DSLOT}
    s_mov_b32 s{S_IT}, 0
    s_waitcnt lgkmcnt(0)
    s_barrier
    """)

def same_xcd_scc(vreg):
    return [f"v_readfirstlane_b32 s{S_A}, v{vreg}", "s_nop 3", f"s_bfe_u32 s{S_A}, s{S_A}, {(21 << 16) | 6:#x}", f"s_cmp_eq_u32 s{S_A}, s{S_EXP}"]

def first_hooks(typ, ns, B):
    t = typ
    bar0 = [f"s_cmp_eq_u32 s{S_WAVE}, 0", f"s_cbranch_scc0 L_f0_{t}"]
    bar0 += same_xcd_scc(V_POLL)
    bar0 += [f"s_cbranch_scc1 L_f0w_{t}", "buffer_wbl2 sc1", "s_waitcnt vmcnt(0)", f"L_f0w_{t}:", f"v_mov_b32 v{V_TMP}, 1", "s_nop 1"]
    bar0 += lane_exec1([f"global_atomic_add v{V_PADDR}, v{V_TMP}, s[{S_DBG}:{S_DBG+1}] sc1"])
    bar0 += [f"L_f0_{t}:"]
    bar0 += mark_t(f"bar0 {t}", 6)
    bar1 = [f"s_mov_b32 s{S_CNT}, 0x40000", f"L_f1_{t}:",
            f"v_readfirstlane_b32 s{S_A}, v{V_POLL}", "s_nop 3", f"s_and_b32 s{S_A}, s{S_A}, 7", f"s_cmp_ge_u32 s{S_A}, s{S_NCL}",
            f"s_cbranch_scc1 L_f1ok_{t}",
            f"global_load_dword v{V_POLL}, v{V_PADDR}, s[{S_DBG}:{S_DBG+1}] sc1", "s_waitcnt vmcnt(0)",
            f"s_sub_u32 s{S_CNT}, s{S_CNT}, 1", f"s_cmp_lg_u32 s{S_CNT}, 0", f"s_cbranch_scc1 L_f1_{t}",
            f"L_f1ok_{t}:"]
    bar1 += same_xcd_scc(V_POLL)
    bar1 += [f"s_cbranch_scc1 L_f1s_{t}", "buffer_inv sc1", "s_waitcnt vmcnt(0)", f"L_f1s_{t}:"]
    bar1 += mark_t(f"bar1 polled {t}", 8)
    bar1 = mark_t(f"bar1 passed {t}", 7) + bar1
    hooks = {'bar0': ("s_waitcnt vmcnt(0) lgkmcnt(0)", bar0), 'bar1': ("s_waitcnt vmcnt(0) lgkmcnt(0)", bar1)}
    hooks['ins'] = {(ns + B - 4, 3): [f"global_load_dword v{V_POLL}, v{V_PADDR}, s[{S_DBG}:{S_DBG+1}] sc1"]}
    if typ == 'H':
        wod = [f"s_mul_i32 s{S_A}, s{S_WAVE}, {5*1024}", f"s_add_u32 m0, s{S_A}, {WOIMG}"]
        wod += [f"buffer_load_dwordx4 v{V_L16}, s[{S_WO}:{S_WO+3}], s{S_A} offen offset:{c*1024} lds" for c in range(4)]
        wod += [f"s_add_u32 s{S_A}, s{S_A}, 4096", f"s_add_u32 m0, s{S_A}, {WOIMG}", f"buffer_load_dwordx4 v{V_L16}, s[{S_WO}:{S_WO+3}], s{S_A} offen lds"]
        adr = [f"v_lshrrev_b32 v{V_TMP+1}, 4, v{V_L16}", f"v_lshrrev_b32 v{V_W1}, 5, v{V_TMP+1}", f"v_lshlrev_b32 v{V_W1}, 2, v{V_W1}",
               f"v_and_b32 v{V_LW}, 15, v{V_TMP+1}", f"v_lshrrev_b32 v{V_LW}, 2, v{V_LW}", f"v_add_u32 v{V_W1}, v{V_W1}, v{V_LW}",
               f"v_mul_u32_u24 v{V_W0}, 192, v{V_W1}", f"v_lshrrev_b32 v{V_W1}, 4, v{V_TMP+1}", f"v_and_b32 v{V_W1}, 1, v{V_W1}",
               f"v_lshlrev_b32 v{V_W1}, 5, v{V_W1}", f"v_add_u32 v{V_W0}, v{V_W0}, v{V_W1}", f"v_and_b32 v{V_LW}, 3, v{V_TMP+1}",
               f"v_lshlrev_b32 v{V_LW}, 3, v{V_LW}", f"v_add_u32 v{V_W0}, v{V_W0}, v{V_LW}", f"v_add_u32 v{V_W0}, {WOIMG}, v{V_W0}"]
        trs = []
        for m in range(3):
            for tt in range(6):
                for jj in range(2):
                    trs.append(f"ds_read_b64_tr_b16 {a(A_WO+(m*6+tt)*4+2*jj,2)}, v{V_W0} offset:{(16*tt + 8*jj)*192 + 64*m}")
        hooks['chain'] = {1: wod + adr, B + 1: trs}
    return hooks

def poll2_addr():
    return [f"s_mul_i32 s{S_A}, s{S_J}, 7", f"v_lshrrev_b32 v{V_PADDR}, 4, v{V_L16}", f"v_min_u32 v{V_PADDR}, 6, v{V_PADDR}",
            f"v_add_u32 v{V_PADDR}, s{S_A}, v{V_PADDR}", f"v_add_u32 v{V_PADDR}, {DOFF}, v{V_PADDR}", f"v_lshlrev_b32 v{V_PADDR}, 2, v{V_PADDR}"]

STUBS = []
def steady_hooks(typ):
    if typ != 'H': return {}
    h = {}
    h['bar0'] = ("s_waitcnt vmcnt(0) lgkmcnt(0)", [f"s_cmp_eq_u32 s{S_IT}, {NSTAGE-2}", "s_cbranch_scc1 L_stub0", "L_stub0_ret:"])
    h['bar1'] = ("s_waitcnt vmcnt(0) lgkmcnt(0)", [f"s_cmp_eq_u32 s{S_IT}, {NSTAGE-2}", "s_cbranch_scc1 L_stub1", "L_stub1_ret:"])
    st = ["L_stub0:"] + poll2_addr() + [f"global_load_dword v{V_POLL}, v{V_PADDR}, s[{S_DBG}:{S_DBG+1}] sc1", "s_branch L_stub0_ret"]
    st += ["L_stub1:", "s_waitcnt vmcnt(0)", f"s_mov_b32 s{S_CNT}, 0x40000", "L_p2:",
           f"v_bfe_u32 v{V_POLL}, v{V_POLL}, 3, 3", f"v_cmp_gt_u32 vcc, 5, v{V_POLL}", "s_nop 3", "s_cmp_eq_u64 vcc, 0", "s_cbranch_scc1 L_p2ok",
           f"global_load_dword v{V_POLL}, v{V_PADDR}, s[{S_DBG}:{S_DBG+1}] sc1", "s_waitcnt vmcnt(0)",
           f"s_sub_u32 s{S_CNT}, s{S_CNT}, 1", f"s_cmp_lg_u32 s{S_CNT}, 0", "s_cbranch_scc1 L_p2", "L_p2ok:"]
    for q in range(4):
        for t in range(3):
            st.append(f"buffer_load_dwordx4 {a(A_OV+12*q+4*t,4)}, v{V_L16}, s[{S_WS}:{S_WS+3}], s{S_OVO+q} offen offset:{t*1024} sc1")
    st.append("s_branch L_stub1_ret")
    STUBS.extend(st)
    return h

def main_loops():
    P(f"s_cmp_eq_u32 s{S_TYPE}, 0")
    P("s_cbranch_scc1 L_startV")
    for typ in "HV":
        r0 = build(typ, typ)
        f = build(typ, typ, 'first', first_hooks(typ, r0['ns'], r0['B']))
        r = build(typ, typ, 'steady', steady_hooks(typ))
        if typ == 'V': P("L_startV:")
        P.ext(f['pre']); P.ext(f['body']); P.ext(f['tail'][:-1])
        P.ext(mark_t(f"first iter done {typ}", 9))
        P.ext(span(1))
        P(".p2align 6")
        P(f"L_loop_{typ}:")
        P.ext(r['body'])
        if TIMING:
            P(f"""
            s_memrealtime s[56:57]
            s_memtime s[58:59]
            s_lshr_b32 s57, s{S_IT}, 1
            s_waitcnt lgkmcnt(0)
            s_lshr_b32 s57, s{S_IT}, 1
            s_add_u32 m0, s57, 16
            s_nop 3
            v_writelane_b32 v14, s56, m0
            v_writelane_b32 v15, s58, m0
            """)
        P.ext(r['tail']); P.ext(r['post'])
        P(f"s_branch L_epi{typ}")
        nb = lambda L: [x for x in L if not x.startswith(("s_cbranch", "s_branch"))]
        section_check(f['pre'] + nb(f['body']) + f['tail'][:-1] + nb(r['body']) + r['tail'][:-1] + nb(r['body']) + r['post'], "loop" + typ)

def norm_ops(q):
    o = O(q)
    L = [f"v_rcp_f32 v{V_TMP}, v{o+24}", "s_nop 0"]
    for r in range(0, 24, 2):
        L.append(f"v_pk_mul_f32 {v(o+r,2)}, {v(o+r,2)}, {v(V_TMP,2)} op_sel_hi:[1,0]")
    for j in range(12):
        L.append(f"v_cvt_pk_bf16_f32 v{o+j}, v{o+2*j}, v{o+2*j+1}")
    return L

def epilogue_V():
    P("L_epiV:")
    P.ext(mark_t("V loop end", 10))
    P.ext(span(2))
    mark = len(P.L)
    P("s_nop 7\ns_nop 7")
    for q in range(3):
        P.ext(norm_ops(q))
        for t in range(3):
            P(f"buffer_store_dwordx4 {v(O(q)+4*t,4)}, v{V_L16}, s[{S_WS}:{S_WS+3}], s{S_OVO+q} offen offset:{t*1024} sc1")
    P("s_waitcnt vmcnt(0)")
    P("s_barrier")
    section_check(P.L[mark:], "epiV")
    P(f"s_cmp_eq_u32 s{S_WAVE}, 0\ns_cbranch_scc0 L_sig2\nv_mov_b32 v{V_TMP}, 8\ns_lshl_b32 s{S_B}, s{S_CL}, 2\ns_add_u32 s{S_B}, s{S_B}, {DOFF*4}\nv_mov_b32 v{V_PADDR}, s{S_B}\ns_nop 1")
    P.ext(lane_exec1([f"global_atomic_add v{V_PADDR}, v{V_TMP}, s[{S_DBG}:{S_DBG+1}] sc1"]))
    P("L_sig2:")
    P.ext(mark_t("V epi end"))
    P.ext(span(3))
    P("s_branch L_exit2" if TIMING else "s_branch L_exit")

def epilogue_H():
    P("L_epiH:")
    P.ext(mark_t("H loop end", 10))
    P.ext(span(2))
    mark = len(P.L)
    DS = [208, 144]
    def M(q):
        D = DS[q % 2]; L = []
        for t in range(6):
            for m in range(3):
                bsrc = v(O(q)+4*t, 4) if t < 3 else a(A_OV+12*q+4*(t-3), 4)
                d = v(D+16*m, 16)
                L.append(f"v_mfma_f32_32x32x16_bf16 {d}, {a(A_WO+(m*6+t)*4,4)}, {bsrc}, {'0' if t == 0 else d}")
        return L
    def F(q):
        D = DS[q % 2]; L = []
        for m in range(3):
            for pr in range(2):
                tmp = 192 + 4*((2*m+pr) % 4)
                for j in range(4):
                    L.append(f"v_cvt_pk_bf16_f32 v{tmp+j}, v{D+16*m+8*pr+2*j}, v{D+16*m+8*pr+2*j+1}")
                L.append("s_nop 1")
                L.append(f"v_permlane32_swap_b32 v{tmp}, v{tmp+2}")
                L.append(f"v_permlane32_swap_b32 v{tmp+1}, v{tmp+3}")
                L.append(f"buffer_store_dwordx4 {v(tmp,4)}, v{V_X}, s[{S_OUT}:{S_OUT+3}], s{S_XO+q} offen offset:{64*m+32*pr}")
        return L
    P(f"""
    s_lshr_b32 s{S_A}, s{S_WAVE}, 1
    s_mul_i32 s{S_A}, s{S_A}, {TILE}
    s_add_u32 s{S_A}, s{S_A}, {XCHG}
    v_add_u32 v{V_LW}, s{S_A}, v{V_L16}
    s_and_b32 s{S_B}, s{S_WAVE}, 1
    s_nop 7
    s_nop 7
    s_cmp_eq_u32 s{S_B}, 0
    s_cbranch_scc1 L_xw_skip
    """)
    for c in range(7):
        P(f"ds_write_b128 v{V_LW}, {v(O(3)+4*c,4)} offset:{c*1024}")
    P("L_xw_skip:")
    P.ext(norm_ops(0))
    P("s_waitcnt lgkmcnt(0)")
    P("s_barrier")
    P("s_waitcnt vmcnt(0)")
    P.ext(interleave(M(0), norm_ops(1), start=0, per=2))
    P.ext(interleave(M(1), norm_ops(2) + F(0), start=0, per=4))
    m1 = len(P.L)
    P(f"s_cmp_eq_u32 s{S_B}, 0")
    P("s_cbranch_scc0 L_epi_odd")
    me = len(P.L)
    xr = [f"ds_read_b128 {v(O(0)+4*c,4)}, v{V_LW} offset:{c*1024}" for c in range(7)]
    xa = ["s_waitcnt lgkmcnt(0)"] + [f"v_add_f32 v{O(3)+r}, v{O(3)+r}, v{O(0)+r}" for r in range(28)]
    P.ext(interleave(M(2), xr + ["s_nop 0"]*2 + F(1)[:18] + xa + norm_ops(3) + F(1)[18:], start=0, per=6))
    P("s_nop 1")
    P.ext(interleave(M(3), ["s_nop 0"]*8 + F(2), start=0, per=4))
    P("s_nop 7\ns_nop 7")
    P.ext(F(3))
    section_check(P.L[mark:m1] + P.L[me:], "epiH_even")
    P.ext(mark_t("H even end", 12))
    P.ext(span(3))
    P("s_branch L_exit2" if TIMING else "s_branch L_exit")
    P("L_epi_odd:")
    mo = len(P.L)
    P.ext(interleave(M(2), ["s_nop 0"]*8 + F(1), start=0, per=4))
    P("s_nop 7\ns_nop 7")
    P.ext(F(2))
    section_check(P.L[mark:m1] + P.L[mo:], "epiH_odd")
    P.ext(mark_t("H odd end", 11))

prologue()
production()
P.ext(span(0))
P.ext(mark_t("production done", 5))
attn_setup()
main_loops()
epilogue_V()
epilogue_H()
if TIMING:
    P("L_exit2:")
    P(f"""
    s_lshl_b32 s57, s{S_WGID}, 2
    s_add_u32 s57, s57, s{S_WAVE}
    s_lshl_b32 s57, s57, 8
    s_add_u32 s57, s57, {TMBASE}
    v_lshrrev_b32 v13, 1, v{V_L16}
    s_mov_b64 exec, 0xffffffff
    buffer_store_dwordx2 v[14:15], v13, s[{S_WS}:{S_WS+3}], s57 offen
    """)
P("L_exit:")
P("s_endpgm")
P.ext(STUBS)

if CHK:
    print("\n".join(CHK[:40])); print(len(CHK), "problems"); sys.exit(1)
hdr = open("standalone__window_attn_cswin__vision.s.ref").read().split("; Override launch")[0]
src = hdr + f"; @launch grid=(256,1,1) block=(256,1,1) lds={LDSBYTES}\n" + '.amdgcn_target "amdgcn-amd-amdhsa--gfx950"\n.text\n' + kernel_header(NAME) + P.text() + kernel_footer(NAME, 512, 256, 100, 48)
out = os.environ.get("OUT", "kernel.s")
open(out, "w").write(src)
print("written", out, len(P.L), "lines")
```

```python
import sys, os
from common import *
import mainloop as ML

XPOL = os.environ.get("XPOL", "")
NAME = "standalone__window_attn_cswin__vision_kernel"
STOP = os.environ.get("STOP", "")
TIMING = os.environ.get("TIMING", "")
WBV = os.environ.get("WBV", "")
OUTPOL = os.environ.get("OUTPOL", "")
HSPAN = os.environ.get("HSPAN", "")
DOFF = 8 if HSPAN else 0
PERMUTE = os.environ.get("PERMUTE", "")
XBYTES = 224*224*96*2
WBYTES = 96*288*2
WOBYTES = 96*96*2
KVBYTES = 56*56*TILE
OVBASE = 0x1600000
OVBYTES = 56*28*3072
WSBYTES = 0x1E00000
TMBASE = 0x1C00000
assert OVBASE >= KVBYTES
WIMG = 3*STAGE
PLANE = 9216
XCHG = RING
WOIMG = 163840 - WOBYTES
LDSBYTES = 163840
SCALE_HEX = 0x3e553b95

S_SC = 46
S_XO = 68
S_TB = 72
S_KO = 76
S_KO2 = 80
S_LO = 84
S_OVO = 88
S_MASK = 92
S_CNT = 94
S_EXP = 95
S_NCL = 29

A_XF = 160
A_WF = 40
A_WO = 64
A_OV = 140
V_X = 6; V_W0 = 7; V_W1 = 8; V_LW = 9
V_TMP = 10
V_POLL = 12
V_PADDR = 13
DSET = [16, 96]
V_ONES = 176
V_PK = 192

P = Prog()
CHK = []
NMARK = [0]
def mark_t(name, idx=None):
    if not TIMING: return []
    if idx is not None: NMARK[0] = idx
    i = NMARK[0]; NMARK[0] += 1
    print("mark", i, name)
    return ["s_memrealtime s[56:57]", "s_memtime s[58:59]", "s_waitcnt lgkmcnt(0)",
            f"v_writelane_b32 v14, s56, {i}", f"v_writelane_b32 v15, s58, {i}"]
SPN = [0]
def span(slot, neg=False):
    if not HSPAN: return []
    if slot == 'start':
        return ["s_memrealtime s[96:97]", "s_waitcnt lgkmcnt(0)"]
    SPN[0] += 1
    lab = f"L_span{SPN[0]}"
    L = [f"s_and_b32 s56, s{S_WGID}, 0xf7", "s_cmp_eq_u32 s56, 0xf0", f"s_cselect_b32 s57, {16 + slot*4}, {slot*4}",
         f"s_cselect_b32 s58, 0xf0, 0", f"s_cmp_eq_u32 s56, s58", f"s_cbranch_scc0 {lab}",
         f"s_and_b32 s58, s{S_WGID}, 8", f"s_or_b32 s58, s58, s{S_WAVE}", "s_cmp_eq_u32 s58, 0", f"s_cbranch_scc0 {lab}",
         "s_memrealtime s[58:59]", "s_waitcnt lgkmcnt(0)", "s_sub_u32 s58, s58, s96",
         "v_mov_b32 v14, s58", "v_mov_b32 v15, s57", "s_mov_b64 s[98:99], exec", "s_mov_b64 exec, 1",
         f"global_store_dword v15, v14, s[{S_DBG}:{S_DBG+1}]", "s_mov_b64 exec, s[98:99]", f"{lab}:"]
    return L
def section_check(lines, name):
    CHK.extend(check_linear([l for l in lines], name))
def wf(tile, t): return A_WF + (tile*6 + t)*4

def lane_exec1(lines):
    return [f"s_mov_b64 s[{S_MASK}:{S_MASK+1}], exec", "s_mov_b64 exec, 1"] + lines + [f"s_mov_b64 exec, s[{S_MASK}:{S_MASK+1}]"]

def prologue():
    P(f"""
    s_load_dwordx4 s[4:7], s[0:1], 0
    s_load_dwordx4 s[60:63], s[0:1], 16
    s_load_dwordx4 s[64:67], s[0:1], 32
    v_lshrrev_b32 v{V_TMP}, 6, v0
    v_and_b32 v{V_TMP+1}, 63, v0
    v_lshlrev_b32 v{V_L16}, 4, v{V_TMP+1}
    v_readfirstlane_b32 s{S_WAVE}, v{V_TMP}
    """)
    if PERMUTE:
        P(f"s_cmp_ge_u32 s{S_WGID}, 256\ns_cbranch_scc1 L_exit")
        P(f"s_lshr_b32 s{S_A}, s{S_WGID}, 3\ns_lshl_b32 s{S_WGID}, s{S_WGID}, 5\ns_or_b32 s{S_WGID}, s{S_WGID}, s{S_A}\ns_and_b32 s{S_WGID}, s{S_WGID}, 255")
    role_decode(P, "L_exit")
    mark = len(P.L)
    P(f"""
    v_and_b32 v{V_TMP}, 31, v{V_TMP+1}
    v_lshrrev_b32 v{V_TMP+2}, 3, v{V_TMP}
    v_and_b32 v{V_TMP+3}, 7, v{V_TMP}
    v_mul_u32_u24 v{V_TMP+2}, {224*192}, v{V_TMP+2}
    v_mul_u32_u24 v{V_TMP+3}, 192, v{V_TMP+3}
    v_add_u32 v{V_X}, v{V_TMP+2}, v{V_TMP+3}
    v_lshrrev_b32 v{V_TMP+2}, 5, v{V_TMP+1}
    v_lshlrev_b32 v{V_TMP+3}, 4, v{V_TMP+2}
    v_add_u32 v{V_X}, v{V_X}, v{V_TMP+3}
    """)
    def geom(b):
        if b < 3:
            P(f"s_mul_i32 s{S_A}, s{S_WAVE}, 3\ns_add_u32 s{S_A}, s{S_A}, {b}")
            P(f"""
            s_lshr_b32 s{S_B}, s{S_A}, 2
            s_mul_i32 s{S_B}, s{S_B}, {STAGE}
            s_and_b32 s{S_C}, s{S_A}, 3
            s_mul_i32 s{S_C}, s{S_C}, {TILE}
            s_add_u32 s{S_LO+b}, s{S_B}, s{S_C}
            """)
        else:
            P(f"s_lshr_b32 s{S_A}, s{S_WAVE}, 1\ns_add_u32 s{S_A}, s{S_A}, 12")
        P(f"""
        s_add_u32 s{S_A}, s{S_A}, s{S_START}
        s_cmp_ge_u32 s{S_A}, 56
        s_cselect_b32 s{S_B}, 56, 0
        s_cselect_b32 s{S_D}, 1, 0
        s_sub_u32 s{S_TB+b}, s{S_A}, s{S_B}
        s_and_b32 s{S_A}, s{S_TB+b}, 1
        s_lshl_b32 s{S_B}, s{S_STRIPE}, 1
        s_add_u32 s{S_A}, s{S_A}, s{S_B}
        s_lshr_b32 s{S_B}, s{S_TB+b}, 1
        s_cmp_eq_u32 s{S_TYPE}, 0
        s_cselect_b32 s{S_A}, s{S_TB+b}, s{S_A}
        s_cselect_b32 s{S_B}, s{S_STRIPE}, s{S_B}
        s_mul_i32 s{S_C}, s{S_A}, {4*224*192}
        s_mul_i32 s{S_XO+b}, s{S_B}, {8*192}
        s_add_u32 s{S_XO+b}, s{S_XO+b}, s{S_C}
        """)
        def rest():
            P(f"""
            s_and_b32 s{S_A}, s{S_TB+b}, 1
            s_lshl_b32 s{S_B}, s{S_STRIPE}, 1
            s_add_u32 s{S_A}, s{S_A}, s{S_B}
            s_lshr_b32 s{S_B}, s{S_TB+b}, 1
            s_cmp_eq_u32 s{S_TYPE}, 0
            s_cselect_b32 s{S_A}, s{S_TB+b}, s{S_A}
            s_cselect_b32 s{S_B}, s{S_STRIPE}, s{S_B}
            s_mul_i32 s{S_A}, s{S_A}, 28
            s_add_u32 s{S_A}, s{S_A}, s{S_B}
            s_mul_i32 s{S_A}, s{S_A}, 3072
            s_add_u32 s{S_OVO+b}, s{S_A}, {OVBASE}
            s_mul_i32 s{S_B}, s{S_CL}, 56
            s_add_u32 s{S_B}, s{S_B}, s{S_TB+b}
            s_mul_i32 s{S_KO+b}, s{S_B}, {TILE}
            s_add_u32 s{S_KO2+b}, s{S_KO+b}, 4096
            """)
        return rest
    def xloads(b):
        for t in range(6):
            P(f"buffer_load_dwordx4 {a(A_XF+24*b+4*t,4)}, v{V_X}, s[{S_XSRD}:{S_XSRD+3}], s{S_XO+b} offen offset:{32*t}{XPOL}")
    P(f"""
    s_lshl_b32 s{S_A}, s{S_WAVE}, 6
    v_add_u32 v{V_TMP}, s{S_A}, v{V_TMP+1}
    v_mul_u32_u24 v{V_TMP+2}, 10923, v{V_TMP}
    v_lshrrev_b32 v{V_TMP+2}, 16, v{V_TMP+2}
    v_mul_u32_u24 v{V_TMP+3}, 6, v{V_TMP+2}
    v_sub_u32 v{V_TMP+3}, v{V_TMP}, v{V_TMP+3}
    v_mul_u32_u24 v{V_TMP+2}, 576, v{V_TMP+2}
    v_lshlrev_b32 v{V_TMP+3}, 4, v{V_TMP+3}
    v_add_u32 v{V_LW}, v{V_TMP+2}, v{V_TMP+3}
    s_xor_b32 s{S_B}, s{S_TYPE}, 1
    s_mul_i32 s{S_B}, s{S_B}, 96
    s_lshl_b32 s{S_A}, s{S_WAVE}, 10
    s_add_u32 s{S_A}, s{S_A}, {WIMG}
    s_waitcnt lgkmcnt(0)
    s_mov_b32 s{S_W}, s6
    s_and_b32 s{S_W+1}, s7, 0xffff
    s_mov_b32 s{S_W+2}, {WBYTES}
    s_mov_b32 s{S_W+3}, 0x20000
    s_mov_b32 s{S_XSRD}, s4
    s_and_b32 s{S_XSRD+1}, s5, 0xffff
    s_mov_b32 s{S_XSRD+2}, {XBYTES}
    s_mov_b32 s{S_XSRD+3}, 0x20000
    """)
    P.ext(mark_t("start"))
    P.ext(span('start'))
    P(f"s_cmp_eq_u32 s{S_WAVE}, 3\ns_cbranch_scc1 L_nowdma")
    for seg in range(3):
        for k in range(3):
            P(f"s_add_u32 m0, s{S_A}, {seg*PLANE + k*3072}")
            P(f"s_add_u32 s{S_C}, s{S_B}, {seg*192 + k*32*576}")
            P(f"buffer_load_dwordx4 v{V_LW}, s[{S_W}:{S_W+3}], s{S_C} offen lds")
    P("L_nowdma:")
    rest0 = geom(0); xloads(0)
    rests = []
    r = geom(1); xloads(1); rests.append(r)
    P.ext(mark_t("issued loads"))
    rests.append(geom(2)); rests.append(geom(3))
    P(f"""
    s_mov_b32 s{S_WO}, s60
    s_and_b32 s{S_WO+1}, s61, 0xffff
    s_mov_b32 s{S_WO+2}, {WOBYTES}
    s_mov_b32 s{S_WO+3}, 0x20000
    s_mov_b32 s{S_OUT}, s62
    s_and_b32 s{S_OUT+1}, s63, 0xffff
    s_mov_b32 s{S_OUT+2}, {XBYTES}
    s_mov_b32 s{S_OUT+3}, 0x20000
    s_mov_b32 s{S_DBG}, s64
    s_mov_b32 s{S_DBG+1}, s65
    s_mov_b32 s{S_WS}, s66
    s_and_b32 s{S_WS+1}, s67, 0xffff
    s_mov_b32 s{S_WS+2}, {WSBYTES}
    s_mov_b32 s{S_WS+3}, 0x20000
    s_mov_b32 s{S_DM}, s66
    s_and_b32 s{S_DM+1}, s67, 0xffff
    s_mov_b32 s{S_DM+2}, {KVBYTES}
    s_mov_b32 s{S_DM+3}, 0x20000
    s_mov_b32 s{S_NREC}, {KVBYTES}
    s_mov_b32 s{S_SC}, {SCALE_HEX:#x}
    s_mov_b32 s{S_SC+1}, {SCALE_HEX:#x}
    s_sub_u32 s{S_NCL}, 5, s{S_TYPE}
    """)
    P(f"""
    s_getreg_b32 s{S_A}, hwreg(HW_REG_XCC_ID, 0, 4)
    s_mul_i32 s{S_B}, s{S_A}, s{S_A}
    s_lshl_b32 s{S_B}, s{S_B}, 10
    s_lshl_b32 s{S_A}, s{S_A}, 3
    s_add_u32 s{S_A}, s{S_A}, s{S_B}
    s_add_u32 s{S_A}, s{S_A}, 1
    s_mul_i32 s{S_EXP}, s{S_A}, s{S_NCL}
    s_lshl_b32 s{S_A}, s{S_A}, 6
    s_lshl_b32 s{S_B}, s{S_CL}, 2
    s_add_u32 s{S_B}, s{S_B}, {DOFF*4}
    v_mov_b32 v{V_PADDR}, s{S_B}
    v_mov_b32 v{V_TMP}, s{S_A}
    s_cmp_eq_u32 s{S_WAVE}, 0
    s_cbranch_scc0 L_noarr
    """)
    P.ext(lane_exec1([f"global_atomic_add v{V_PADDR}, v{V_TMP}, s[{S_DBG}:{S_DBG+1}] sc1"]))
    P("L_noarr:")
    rest0()
    for r in rests: r()
    for b in range(3):
        P(f"""
        s_mul_i32 s{S_A}, s{S_WAVE}, 3
        s_add_u32 s{S_A}, s{S_A}, s{S_START}
        s_add_u32 s{S_A}, s{S_A}, {b}
        s_cmp_ge_u32 s{S_A}, 56
        s_cselect_b32 s{S_OVO+b}, 0x7fff0000, s{S_OVO+b}
        """)
    P(f"""
    v_lshrrev_b32 v{V_TMP+1}, 4, v{V_L16}
    v_lshrrev_b32 v{V_TMP+2}, 5, v{V_TMP+1}
    v_lshlrev_b32 v{V_TMP+2}, 3, v{V_TMP+2}
    v_and_b32 v{V_TMP}, 15, v{V_TMP+1}
    v_lshrrev_b32 v{V_TMP}, 2, v{V_TMP}
    v_add_u32 v{V_TMP+2}, v{V_TMP+2}, v{V_TMP}
    v_mul_u32_u24 v{V_W0}, 96, v{V_TMP+2}
    v_lshrrev_b32 v{V_TMP+2}, 4, v{V_TMP+1}
    v_and_b32 v{V_TMP+2}, 1, v{V_TMP+2}
    v_lshlrev_b32 v{V_TMP}, 5, v{V_TMP+2}
    v_add_u32 v{V_W0}, v{V_W0}, v{V_TMP}
    v_and_b32 v{V_TMP}, 3, v{V_TMP+1}
    v_lshlrev_b32 v{V_TMP}, 3, v{V_TMP}
    v_add_u32 v{V_W0}, v{V_W0}, v{V_TMP}
    v_add_u32 v{V_W0}, {WIMG}, v{V_W0}
    v_mul_u32_u24 v{V_TMP+2}, {PLANE - 96}, v{V_TMP+2}
    v_add_u32 v{V_W1}, v{V_W0}, v{V_TMP+2}
    v_and_b32 v{V_TMP}, 27, v{V_TMP+1}
    v_cmp_eq_u32 vcc, 16, v{V_TMP}
    v_mov_b32 v{V_TMP+2}, 0
    v_mov_b32 v{V_TMP}, 1.0
    v_cndmask_b32 v{V_ONES}, v{V_TMP+2}, v{V_TMP}, vcc
    v_and_b32 v{V_TMP}, 16, v{V_TMP+1}
    v_cmp_eq_u32 s[{S_MASK}:{S_MASK+1}], 0, v{V_TMP}
    """)
    for r in range(1, 16): P(f"v_mov_b32 v{V_ONES+r}, v{V_ONES}")
    section_check([l for l in P.L[mark:] if not l.startswith("s_waitcnt vmcnt")], "prologue")

DJ = [16, 32, 48, 64]
WOFFS = [0, 64, PLANE + 32, 2*PLANE, 2*PLANE + 64]
def tr_reads(tile):
    L = []
    for t in range(6):
        for jj in range(2):
            base = V_W1 if tile == 1 else V_W0
            off = (16*t + 4*jj)*96 + WOFFS[tile]
            if tile < 4: L.append(f"ds_read_b64_tr_b16 {a(wf(tile,t)+2*jj,2)}, v{base} offset:{off}")
            else: L.append(f"ds_read_b64_tr_b16 {v(80+4*t+2*jj,2)}, v{base} offset:{off}")
    return L
def job_mfmas(k):
    b, tile = divmod(k, 5)
    D = DJ[k % 4]; d = v(D, 16); L = []
    for t in range(6):
        xf = a(A_XF+24*b+4*t, 4)
        if tile < 3:
            L.append(f"v_mfma_f32_32x32x16_bf16 {d}, {a(wf(tile,t),4)}, {xf}, {'0' if t == 0 else d}")
        else:
            c = d if t > 0 else ('0' if tile == 3 else v(V_ONES, 16))
            L.append(f"v_mfma_f32_32x32x16_bf16 {d}, {xf}, {a(wf(tile,t),4)}, {c}")
    return L
PKN = [0]
def job_post(k):
    b, tile = divmod(k, 5)
    D = DJ[k % 4]; L = []
    def out_frag(sreg, c):
        tmp = V_PK + 4*(PKN[0] % 4); PKN[0] += 1
        for j in range(4):
            L.append(f"v_cvt_pk_bf16_f32 v{tmp+j}, v{sreg+2*j}, v{sreg+2*j+1}")
        if b < 3: L.append(f"ds_write_b128 v{V_LW}, {v(tmp,4)} offset:{c*1024}")
        so = S_KO+b if c < 4 else S_KO2+b
        L.append(f"buffer_store_dwordx4 {v(tmp,4)}, v{V_L16}, s[{S_WS}:{S_WS+3}], s{so} offen offset:{(c%4)*1024}")
    def qpart(r0, n, q0):
        for r in range(r0, r0+n, 2):
            L.append(f"v_pk_mul_f32 {v(D+r,2)}, {v(D+r,2)}, s[{S_SC}:{S_SC+1}]")
        for j in range(n//2):
            L.append(f"v_cvt_pk_bf16_f32 v{Q(b)+q0+j}, v{D+r0+2*j}, v{D+r0+2*j+1}")
    if tile == 0:
        if b < 3: L.append(f"v_add_u32 v{V_LW}, s{S_LO+b}, v{V_L16}")
        qpart(0, 16, 0)
    elif tile == 1:
        qpart(0, 8, 8); out_frag(D+8, 0)
    elif tile == 2:
        out_frag(D, 1); out_frag(D+8, 2)
    elif tile == 3:
        out_frag(D, 3); out_frag(D+8, 4)
    else:
        out_frag(D, 5); out_frag(D+8, 6)
    return L

def fcost(x):
    if x.startswith("ds_write"): return 24
    if x.startswith("buffer_store"): return 16
    if x.startswith(("buffer_", "global_")): return 12
    if x.startswith("ds_read"): return 6
    if x.startswith("s_nop"): return 4 * (int(x.split()[1]) + 1)
    if x.startswith("WAIT"): return 0
    return 4
def interleave(mf, fill, start=8, per=4, budget=None):
    out = []
    fill = list(fill)
    for i, m in enumerate(mf):
        out.append(m)
        if i >= start:
            if budget is None:
                for k in range(per):
                    if fill: out.append(fill.pop(0))
            else:
                t = 0
                while fill and (t == 0 or t + fcost(fill[0]) <= budget):
                    t += fcost(fill[0]); out.append(fill.pop(0))
    out.extend(fill)
    return out

def resolve_vm(lines, pre_ops):
    q = list(pre_ops); out = []
    for l in lines:
        if l.startswith("WAITX"):
            b = int(l.split()[1])
            idx = max(i for i, t in enumerate(q) if t == f"x{b}")
            out.append(f"s_waitcnt vmcnt({len(q) - 1 - idx})")
        else:
            out.append(l)
            if l.startswith(("buffer_", "global_")):
                m = re.search(r"a\[(\d+):", l)
                if l.startswith("buffer_load") and m and " lds" not in l and int(m.group(1)) >= A_XF: q.append(f"x{(int(m.group(1)) - A_XF)//24}")
                else: q.append("o")
    return out, q

def production():
    import re as _re
    global re
    re = _re
    def xl(b): return [f"buffer_load_dwordx4 {a(A_XF+24*b+4*t,4)}, v{V_X}, s[{S_XSRD}:{S_XSRD+3}], s{S_XO+b} offen offset:{32*t}{XPOL}" for t in range(6)]
    P("s_waitcnt vmcnt(12)")
    P.ext(mark_t("W landed", 2))
    P("s_barrier")
    L = []
    L += tr_reads(0) + tr_reads(1) + xl(2)
    L += ["s_waitcnt lgkmcnt(12)", "WAITX 0"]
    mask = [f"v_cndmask_b32 v{80+r}, 0, v{80+r}, s[{S_MASK}:{S_MASK+1}]" for r in range(24)] + [f"v_accvgpr_write_b32 {a(wf(4,0)+r)}, v{80+r}" for r in range(24)]
    def stream(k0, k1, L):
        for k in range(k0, k1):
            fill = []
            if k == 0: fill = tr_reads(2) + xl(3)
            if k == 1: fill = tr_reads(3)
            if k == 2: fill = tr_reads(4) + job_post(0)
            if k == 3: fill = job_post(1) + mask[:24]
            if k == 4: fill = mask[24:] + job_post(2)
            if k >= 5: fill = job_post(k-2)
            if k in (1, 2, 3): L.append("s_waitcnt lgkmcnt(0)")
            if k == 4:
                L.append("s_waitcnt lgkmcnt(0)")
                L.extend(mask); L.append("s_nop 1")
                fill = job_post(2)
            if k == 3: fill = job_post(1)
            if k % 5 == 0 and k > 0: L.append(f"WAITX {k//5}")
            L.extend(interleave(job_mfmas(k), fill, start=0, budget=24))
    stream(0, 15, L)
    Lc, q = resolve_vm(L, ["o"]*9 + ["x0"]*6 + ["x1"]*6)
    P.ext(Lc)
    P.ext(mark_t("M2 issued", 28))
    P(f"s_cmp_eq_u32 s{S_TYPE}, 0")
    P("s_cbranch_scc1 L_prodV")
    LH = []
    stream(15, 20, LH)
    pk = PKN[0]
    LH += ["s_nop 3"] + job_post(18) + ["s_nop 3"] + job_post(19)
    LH, _ = resolve_vm(LH, q)
    P.ext(LH)
    P("s_branch L_proddone")
    P("L_prodV:")
    PKN[0] = pk - 0
    LV = ["s_nop 3"] + job_post(13) + ["s_nop 3"] + job_post(14)
    P.ext(LV)
    P("L_proddone:")
    pre = xl(0) + xl(1)
    section_check(pre + Lc + LH, "prodH")
    section_check(pre + Lc + LV, "prodV")

def attn_setup():
    P(f"""
    global_load_dword v{V_POLL}, v{V_PADDR}, s[{S_DBG}:{S_DBG+1}] sc1
    s_mul_i32 s{S_A}, s{S_CL}, {56*TILE}
    s_add_u32 s{S_GEND}, s{S_A}, {56*TILE}
    s_add_u32 s{S_B}, s{S_START}, s{S_WAVE}
    s_add_u32 s{S_B}, s{S_B}, 8
    s_cmp_ge_u32 s{S_B}, 56
    s_cselect_b32 s{S_C}, 56, 0
    s_sub_u32 s{S_B}, s{S_B}, s{S_C}
    s_mul_i32 s{S_B}, s{S_B}, {TILE}
    s_add_u32 s{S_GOFF}, s{S_A}, s{S_B}
    s_mul_i32 s{S_LBASE}, s{S_WAVE}, {TILE}
    s_add_u32 s{S_LBASE}, s{S_LBASE}, {DSLOT}
    s_and_b32 s{S_A}, s{S_WAVE}, 1
    s_mul_i32 s{S_A}, s{S_A}, s{S_TYPE}
    """)
    for p in range(4):
        P(f"""
        s_add_u32 s{S_B}, s{S_A}, {p}
        s_and_b32 s{S_B}, s{S_B}, 3
        s_mul_i32 s{S_B}, s{S_B}, {TILE}
        v_add_u32 v{V_AP+p}, s{S_B}, v{V_L16}
        """)
    P(f"""
    s_mov_b32 s{S_DELTA}, {DSLOT}
    s_mov_b32 s{S_IT}, 0
    s_waitcnt lgkmcnt(0)
    s_barrier
    """)

def same_xcd_scc(vreg):
    return [f"v_readfirstlane_b32 s{S_A}, v{vreg}", "s_nop 3", f"s_bfe_u32 s{S_A}, s{S_A}, {(21 << 16) | 6:#x}", f"s_cmp_eq_u32 s{S_A}, s{S_EXP}"]

def first_hooks(typ, ns, B):
    t = typ
    bar0 = [f"s_cmp_eq_u32 s{S_WAVE}, 0", f"s_cbranch_scc0 L_f0_{t}"]
    bar0 += same_xcd_scc(V_POLL)
    bar0 += [f"s_cbranch_scc1 L_f0w_{t}", "buffer_wbl2 sc1", "s_waitcnt vmcnt(0)", f"L_f0w_{t}:", f"v_mov_b32 v{V_TMP}, 1", "s_nop 1"]
    bar0 += lane_exec1([f"global_atomic_add v{V_PADDR}, v{V_TMP}, s[{S_DBG}:{S_DBG+1}] sc1"])
    bar0 += [f"L_f0_{t}:"]
    bar0 += mark_t(f"bar0 {t}", 6)
    bar1 = [f"s_mov_b32 s{S_CNT}, 0x40000", f"L_f1_{t}:",
            f"v_readfirstlane_b32 s{S_A}, v{V_POLL}", "s_nop 3", f"s_and_b32 s{S_A}, s{S_A}, 7", f"s_cmp_ge_u32 s{S_A}, s{S_NCL}",
            f"s_cbranch_scc1 L_f1ok_{t}",
            f"global_load_dword v{V_POLL}, v{V_PADDR}, s[{S_DBG}:{S_DBG+1}] sc1", "s_waitcnt vmcnt(0)",
            f"s_sub_u32 s{S_CNT}, s{S_CNT}, 1", f"s_cmp_lg_u32 s{S_CNT}, 0", f"s_cbranch_scc1 L_f1_{t}",
            f"L_f1ok_{t}:"]
    bar1 += same_xcd_scc(V_POLL)
    bar1 += [f"s_cbranch_scc1 L_f1s_{t}", "buffer_inv sc1", "s_waitcnt vmcnt(0)", f"L_f1s_{t}:"]
    bar1 += mark_t(f"bar1 polled {t}", 8)
    bar1 = mark_t(f"bar1 passed {t}", 7) + bar1
    hooks = {'bar0': ("s_waitcnt vmcnt(0) lgkmcnt(0)", bar0), 'bar1': ("s_waitcnt vmcnt(0) lgkmcnt(0)", bar1)}
    hooks['ins'] = {(ns + B - 4, 3): [f"global_load_dword v{V_POLL}, v{V_PADDR}, s[{S_DBG}:{S_DBG+1}] sc1"]}
    if typ == 'H':
        wod = [f"s_mul_i32 s{S_A}, s{S_WAVE}, {5*1024}", f"s_add_u32 m0, s{S_A}, {WOIMG}"]
        wod += [f"buffer_load_dwordx4 v{V_L16}, s[{S_WO}:{S_WO+3}], s{S_A} offen offset:{c*1024} lds" for c in range(4)]
        wod += [f"s_add_u32 s{S_A}, s{S_A}, 4096", f"s_add_u32 m0, s{S_A}, {WOIMG}", f"buffer_load_dwordx4 v{V_L16}, s[{S_WO}:{S_WO+3}], s{S_A} offen lds"]
        adr = [f"v_lshrrev_b32 v{V_TMP+1}, 4, v{V_L16}", f"v_lshrrev_b32 v{V_W1}, 5, v{V_TMP+1}", f"v_lshlrev_b32 v{V_W1}, 2, v{V_W1}",
               f"v_and_b32 v{V_LW}, 15, v{V_TMP+1}", f"v_lshrrev_b32 v{V_LW}, 2, v{V_LW}", f"v_add_u32 v{V_W1}, v{V_W1}, v{V_LW}",
               f"v_mul_u32_u24 v{V_W0}, 192, v{V_W1}", f"v_lshrrev_b32 v{V_W1}, 4, v{V_TMP+1}", f"v_and_b32 v{V_W1}, 1, v{V_W1}",
               f"v_lshlrev_b32 v{V_W1}, 5, v{V_W1}", f"v_add_u32 v{V_W0}, v{V_W0}, v{V_W1}", f"v_and_b32 v{V_LW}, 3, v{V_TMP+1}",
               f"v_lshlrev_b32 v{V_LW}, 3, v{V_LW}", f"v_add_u32 v{V_W0}, v{V_W0}, v{V_LW}", f"v_add_u32 v{V_W0}, {WOIMG}, v{V_W0}"]
        trs = []
        for m in range(3):
            for tt in range(6):
                for jj in range(2):
                    trs.append(f"ds_read_b64_tr_b16 {a(A_WO+(m*6+tt)*4+2*jj,2)}, v{V_W0} offset:{(16*tt + 8*jj)*192 + 64*m}")
        hooks['chain'] = {1: wod + adr, B + 1: trs}
    return hooks

def poll2_addr():
    return [f"s_mul_i32 s{S_A}, s{S_J}, 7", f"v_lshrrev_b32 v{V_PADDR}, 4, v{V_L16}", f"v_min_u32 v{V_PADDR}, 6, v{V_PADDR}",
            f"v_add_u32 v{V_PADDR}, s{S_A}, v{V_PADDR}", f"v_add_u32 v{V_PADDR}, {DOFF}, v{V_PADDR}", f"v_lshlrev_b32 v{V_PADDR}, 2, v{V_PADDR}"]

STUBS = []
def steady_hooks(typ):
    if typ != 'H': return {}
    h = {}
    h['bar0'] = ("s_waitcnt vmcnt(0) lgkmcnt(0)", [f"s_cmp_eq_u32 s{S_IT}, {NSTAGE-2}", "s_cbranch_scc1 L_stub0", "L_stub0_ret:"])
    h['bar1'] = ("s_waitcnt vmcnt(0) lgkmcnt(0)", [f"s_cmp_eq_u32 s{S_IT}, {NSTAGE-2}", "s_cbranch_scc1 L_stub1", "L_stub1_ret:"])
    st = ["L_stub0:"] + poll2_addr() + [f"global_load_dword v{V_POLL}, v{V_PADDR}, s[{S_DBG}:{S_DBG+1}] sc1", "s_branch L_stub0_ret"]
    st += ["L_stub1:", "s_waitcnt vmcnt(0)", f"s_mov_b32 s{S_CNT}, 0x40000", "L_p2:",
           f"v_bfe_u32 v{V_POLL}, v{V_POLL}, 3, 3", f"v_cmp_gt_u32 vcc, 5, v{V_POLL}", "s_nop 3", "s_cmp_eq_u64 vcc, 0", "s_cbranch_scc1 L_p2ok",
           f"global_load_dword v{V_POLL}, v{V_PADDR}, s[{S_DBG}:{S_DBG+1}] sc1", "s_waitcnt vmcnt(0)",
           f"s_sub_u32 s{S_CNT}, s{S_CNT}, 1", f"s_cmp_lg_u32 s{S_CNT}, 0", "s_cbranch_scc1 L_p2", "L_p2ok:"]
    for q in range(4):
        for t in range(3):
            st.append(f"buffer_load_dwordx4 {a(A_OV+12*q+4*t,4)}, v{V_L16}, s[{S_WS}:{S_WS+3}], s{S_OVO+q} offen offset:{t*1024} sc1")
    st.append("s_branch L_stub1_ret")
    STUBS.extend(st)
    return h

def main_loops():
    P(f"s_cmp_eq_u32 s{S_TYPE}, 0")
    P("s_cbranch_scc1 L_startV")
    for typ in "HV":
        r0 = build(typ, typ)
        f = build(typ, typ, 'first', first_hooks(typ, r0['ns'], r0['B']))
        r = build(typ, typ, 'steady', steady_hooks(typ))
        if typ == 'V': P("L_startV:")
        P.ext(f['pre']); P.ext(f['body']); P.ext(f['tail'][:-1])
        P.ext(mark_t(f"first iter done {typ}", 9))
        P.ext(span(1))
        P(".p2align 6")
        P(f"L_loop_{typ}:")
        P.ext(r['body'])
        if TIMING:
            P(f"""
            s_memrealtime s[56:57]
            s_memtime s[58:59]
            s_lshr_b32 s57, s{S_IT}, 1
            s_waitcnt lgkmcnt(0)
            s_lshr_b32 s57, s{S_IT}, 1
            s_add_u32 m0, s57, 16
            s_nop 3
            v_writelane_b32 v14, s56, m0
            v_writelane_b32 v15, s58, m0
            """)
        P.ext(r['tail']); P.ext(r['post'])
        P(f"s_branch L_epi{typ}")
        nb = lambda L: [x for x in L if not x.startswith(("s_cbranch", "s_branch"))]
        section_check(f['pre'] + nb(f['body']) + f['tail'][:-1] + nb(r['body']) + r['tail'][:-1] + nb(r['body']) + r['post'], "loop" + typ)

def norm_ops(q):
    o = O(q)
    L = [f"v_rcp_f32 v{V_TMP}, v{o+24}", "s_nop 0"]
    for r in range(0, 24, 2):
        L.append(f"v_pk_mul_f32 {v(o+r,2)}, {v(o+r,2)}, {v(V_TMP,2)} op_sel_hi:[1,0]")
    for j in range(12):
        L.append(f"v_cvt_pk_bf16_f32 v{o+j}, v{o+2*j}, v{o+2*j+1}")
    return L

def epilogue_V():
    P("L_epiV:")
    P.ext(mark_t("V loop end", 10))
    P.ext(span(2))
    mark = len(P.L)
    P("s_nop 7\ns_nop 7")
    for q in range(3):
        P.ext(norm_ops(q))
        for t in range(3):
            P(f"buffer_store_dwordx4 {v(O(q)+4*t,4)}, v{V_L16}, s[{S_WS}:{S_WS+3}], s{S_OVO+q} offen offset:{t*1024} sc1")
    P("s_waitcnt vmcnt(0)")
    P("s_barrier")
    section_check(P.L[mark:], "epiV")
    P(f"s_cmp_eq_u32 s{S_WAVE}, 0\ns_cbranch_scc0 L_sig2\nv_mov_b32 v{V_TMP}, 8\ns_lshl_b32 s{S_B}, s{S_CL}, 2\ns_add_u32 s{S_B}, s{S_B}, {DOFF*4}\nv_mov_b32 v{V_PADDR}, s{S_B}\ns_nop 1")
    P.ext(lane_exec1([f"global_atomic_add v{V_PADDR}, v{V_TMP}, s[{S_DBG}:{S_DBG+1}] sc1"]))
    P("L_sig2:")
    if WBV:
        P(f"s_lshr_b32 s{S_A}, s{S_WGID}, 3\ns_or_b32 s{S_A}, s{S_A}, s{S_WAVE}\ns_cmp_lt_u32 s{S_A}, {WBV}\ns_cbranch_scc0 L_nowb\nbuffer_wbl2 sc1\ns_waitcnt vmcnt(0)\nL_nowb:")
    P.ext(mark_t("V epi end"))
    P.ext(span(3))
    P("s_branch L_exit2" if TIMING else "s_branch L_exit")

def epilogue_H():
    P("L_epiH:")
    P.ext(mark_t("H loop end", 10))
    P.ext(span(2))
    mark = len(P.L)
    DS = [208, 144]
    def M(q):
        D = DS[q % 2]; L = []
        for t in range(6):
            for m in range(3):
                bsrc = v(O(q)+4*t, 4) if t < 3 else a(A_OV+12*q+4*(t-3), 4)
                d = v(D+16*m, 16)
                L.append(f"v_mfma_f32_32x32x16_bf16 {d}, {a(A_WO+(m*6+t)*4,4)}, {bsrc}, {'0' if t == 0 else d}")
        return L
    def F(q):
        D = DS[q % 2]; L = []
        for m in range(3):
            for pr in range(2):
                tmp = 192 + 4*((2*m+pr) % 4)
                for j in range(4):
                    L.append(f"v_cvt_pk_bf16_f32 v{tmp+j}, v{D+16*m+8*pr+2*j}, v{D+16*m+8*pr+2*j+1}")
                L.append("s_nop 1")
                L.append(f"v_permlane32_swap_b32 v{tmp}, v{tmp+2}")
                L.append(f"v_permlane32_swap_b32 v{tmp+1}, v{tmp+3}")
                L.append(f"buffer_store_dwordx4 {v(tmp,4)}, v{V_X}, s[{S_OUT}:{S_OUT+3}], s{S_XO+q} offen offset:{64*m+32*pr}{OUTPOL}")
        return L
    P(f"""
    s_lshr_b32 s{S_A}, s{S_WAVE}, 1
    s_mul_i32 s{S_A}, s{S_A}, {TILE}
    s_add_u32 s{S_A}, s{S_A}, {XCHG}
    v_add_u32 v{V_LW}, s{S_A}, v{V_L16}
    s_and_b32 s{S_B}, s{S_WAVE}, 1
    s_nop 7
    s_nop 7
    s_cmp_eq_u32 s{S_B}, 0
    s_cbranch_scc1 L_xw_skip
    """)
    for c in range(7):
        P(f"ds_write_b128 v{V_LW}, {v(O(3)+4*c,4)} offset:{c*1024}")
    P("L_xw_skip:")
    P.ext(norm_ops(0))
    P("s_waitcnt lgkmcnt(0)")
    P("s_barrier")
    P("s_waitcnt vmcnt(0)")
    P.ext(interleave(M(0), norm_ops(1), start=0, per=2))
    P.ext(interleave(M(1), norm_ops(2) + F(0), start=0, per=4))
    m1 = len(P.L)
    P(f"s_cmp_eq_u32 s{S_B}, 0")
    P("s_cbranch_scc0 L_epi_odd")
    me = len(P.L)
    xr = [f"ds_read_b128 {v(O(0)+4*c,4)}, v{V_LW} offset:{c*1024}" for c in range(7)]
    xa = ["s_waitcnt lgkmcnt(0)"] + [f"v_add_f32 v{O(3)+r}, v{O(3)+r}, v{O(0)+r}" for r in range(28)]
    P.ext(interleave(M(2), xr + ["s_nop 0"]*2 + F(1)[:18] + xa + norm_ops(3) + F(1)[18:], start=0, per=6))
    P("s_nop 1")
    P.ext(interleave(M(3), ["s_nop 0"]*8 + F(2), start=0, per=4))
    P("s_nop 7\ns_nop 7")
    P.ext(F(3))
    section_check(P.L[mark:m1] + P.L[me:], "epiH_even")
    P.ext(mark_t("H even end", 12))
    P.ext(span(3))
    P("s_branch L_exit2" if TIMING else "s_branch L_exit")
    P("L_epi_odd:")
    mo = len(P.L)
    P.ext(interleave(M(2), ["s_nop 0"]*8 + F(1), start=0, per=4))
    P("s_nop 7\ns_nop 7")
    P.ext(F(2))
    section_check(P.L[mark:m1] + P.L[mo:], "epiH_odd")
    P.ext(mark_t("H odd end", 11))

prologue()
production()
P.ext(span(0))
P.ext(mark_t("production done", 5))
attn_setup()
main_loops()
epilogue_V()
epilogue_H()
if TIMING:
    P("L_exit2:")
    P(f"""
    s_lshl_b32 s57, s{S_WGID}, 2
    s_add_u32 s57, s57, s{S_WAVE}
    s_lshl_b32 s57, s57, 8
    s_add_u32 s57, s57, {TMBASE}
    v_lshrrev_b32 v13, 1, v{V_L16}
    s_mov_b64 exec, 0xffffffff
    buffer_store_dwordx2 v[14:15], v13, s[{S_WS}:{S_WS+3}], s57 offen
    """)
P("L_exit:")
P("s_endpgm")
P.ext(STUBS)

if CHK:
    print("\n".join(CHK[:40])); print(len(CHK), "problems"); sys.exit(1)
hdr = open("standalone__window_attn_cswin__vision.s.ref").read().split("; Override launch")[0]
src = hdr + f"; @launch grid=(256,1,1) block=(256,1,1) lds={LDSBYTES}\n" + '.amdgcn_target "amdgcn-amd-amdhsa--gfx950"\n.text\n' + kernel_header(NAME) + P.text() + kernel_footer(NAME, 512, 256, 100, 48)
out = os.environ.get("OUT", "kernel.s")
open(out, "w").write(src)
print("written", out, len(P.L), "lines")
```
